```python
import torch

def _softmax(x, axis=-1):
    return torch.softmax(x, dim=axis)
def _gelu(x):
    return torch.nn.functional.gelu(x, approximate="tanh")
def _silu(x):
    return torch.nn.functional.silu(x)
def _sigmoid(x):
    return torch.sigmoid(x)
def _layernorm(x, axis=-1, eps=1e-5):
    m = x.mean(dim=axis, keepdim=True)
    v = x.var(dim=axis, keepdim=True, unbiased=False)
    return (x - m) / torch.sqrt(v + eps)
def _scatter_add(tgt, idx, src, axis=0):
    return tgt.clone().index_add_(axis, idx, src)
def _segment_sum(src, seg, n):
    out = torch.zeros((n,) + src.shape[1:], dtype=src.dtype)
    return out.index_add_(0, seg, src)
def _pad(x, pw):
    flat = tuple(v for pair in reversed(pw) for v in pair)
    return torch.nn.functional.pad(x, flat)

kernel_name = 'gated_mix__linear_attn_block__geglu_ffn__prompt'

def setup_inputs():

    _w = (lambda a: (lambda t: t.to(torch.bfloat16) if t.is_floating_point() else t)(torch.as_tensor(a)))
    def _A_setup():
        B, S, D = 1, 2048, 512
        return {
            "x": _w((lambda *s: torch.randn(*s, dtype=torch.bfloat16) * 0.05)(B, S, D)),
            "wqkv": _w((lambda *s: torch.randn(*s, dtype=torch.bfloat16) * 0.8)(D, 3 * D)),
            "wo": _w((lambda *s: torch.randn(*s, dtype=torch.bfloat16) * 0.05)(D, D)),
        }
    _A_in = _A_setup()

    def _B_setup():
        B, S, D, F = 1, 2048, 512, 1792
        return {
            "x": _w((lambda *s: torch.randn(*s, dtype=torch.bfloat16) * 0.05)(B, S, D)),
            "w_gate": _w((lambda *s: torch.randn(*s, dtype=torch.bfloat16) * 0.05)(D, F)),
            "w_up": _w((lambda *s: torch.randn(*s, dtype=torch.bfloat16) * 0.05)(D, F)),
            "w_down": _w((lambda *s: torch.randn(*s, dtype=torch.bfloat16) * 0.05)(F, D)),
        }
    _B_in = _B_setup()

    return {
        "A_x": _A_in["x"],
        "A_wqkv": _A_in["wqkv"],
        "A_wo": _A_in["wo"],
        "B_x": _B_in["x"],
        "B_w_gate": _B_in["w_gate"],
        "B_w_up": _B_in["w_up"],
        "B_w_down": _B_in["w_down"],
        "gate_w": _w((lambda *s: torch.randn(*s, dtype=torch.bfloat16) * 0.05)(512) * 16.0),
    }

def reference(A_x, A_wqkv, A_wo, B_x, B_w_gate, B_w_up, B_w_down, gate_w):
    def _A_ref(x, wqkv, wo):
        B, S, D = x.shape
        H = 32; Dh = D // H
        qkv = (lambda x, *d: x.permute(*d))((x @ wqkv).reshape(B, S, 3, H, Dh), 2, 0, 3, 1, 4)
        q, k, v = qkv[0], qkv[1], qkv[2]
        phi = lambda t: torch.where(t > 0, t + 1, torch.exp(t)) + 1e-6
        pq, pk = phi(q), phi(k)
        kv = torch.einsum("bhsd,bhse->bhde", pk, v)
        z = torch.einsum("bhsd->bhd", pk)
        num = torch.einsum("bhqd,bhde->bhqe", pq, kv)
        den = torch.einsum("bhqd,bhd->bhq", pq, z)[..., None] + 1e-6
        o = num / den
        return (lambda x, *d: x.permute(*d))(o, 0, 2, 1, 3).reshape(B, S, D) @ wo

    def _B_ref(x, w_gate, w_up, w_down):
        return (_gelu(x @ w_gate) * (x @ w_up)) @ w_down

    x = A_x
    g = _sigmoid((x * gate_w).sum(-1, keepdims=True))
    a = _A_ref(x, A_wqkv, A_wo)
    b = _B_ref(x, B_w_gate, B_w_up, B_w_down)
    return g * a + (1 - g) * b
```

```python
NAME = "gated_mix__linear_attn_block__geglu_ffn__prompt"
WS_BYTES = 268435456
STAMP_OFF = WS_BYTES - (1 << 20)


class Asm:
    def __init__(self):
        self.lines = []
        self.nlab = 0

    def __call__(self, s):
        for l in s.strip("\n").split("\n"):
            self.lines.append("    " + l.strip() if not l.strip().endswith(":") else l.strip())

    def label(self, base="L"):
        self.nlab += 1
        return f"{base}_{self.nlab}"

    def text(self):
        return "\n".join(self.lines) + "\n"


def vr(a, n=1):
    return f"v{a}" if n == 1 else f"v[{a}:{a+n-1}]"


def ar(a, n=1):
    return f"a{a}" if n == 1 else f"a[{a}:{a+n-1}]"


def sr(a, n=1):
    return f"s{a}" if n == 1 else f"s[{a}:{a+n-1}]"


def kernel_head(label):
    return f""".text
.globl {label}
.p2align 8
.type {label},@function
{label}:
"""


def kernel_desc(label, vgpr, accum, sgpr=102):
    return f""".section .rodata,"a"
.p2align 6
.amdhsa_kernel {label}
  .amdhsa_next_free_vgpr {vgpr}
  .amdhsa_next_free_sgpr {sgpr}
  .amdhsa_accum_offset {accum}
  .amdhsa_group_segment_fixed_size 0
  .amdhsa_kernarg_size 88
  .amdhsa_user_sgpr_count 2
  .amdhsa_user_sgpr_kernarg_segment_ptr 1
  .amdhsa_system_sgpr_workgroup_id_x 1
  .amdhsa_float_denorm_mode_32 3
.end_amdhsa_kernel
"""


def srd(a, d, base, nbytes):
    a(f"s_mov_b32 s{d}, s{base}")
    a(f"s_and_b32 s{d+1}, s{base+1}, 0xffff")
    a(f"s_mov_b32 s{d+2}, {nbytes}")
    a(f"s_mov_b32 s{d+3}, 0x20000")
```

```python
import re

TRANS = ("v_exp_f32", "v_log_f32", "v_rcp_f32", "v_rsq_f32", "v_sqrt_f32", "v_sin_f32", "v_cos_f32")
REG_RE = re.compile(r"^(-?)(?:abs\()?([vas])(?:(\d+)|\[(\d+):(\d+)\])\)?$")


def regs_of(op):
    op = op.strip()
    if op == "vcc":
        return {("s", "vcc")}
    if op == "exec":
        return {("s", "exec")}
    if op == "m0":
        return {("s", "m0")}
    m = REG_RE.match(op)
    if not m:
        return set()
    k = m.group(2)
    if m.group(3) is not None:
        return {(k, int(m.group(3)))}
    return {(k, i) for i in range(int(m.group(4)), int(m.group(5)) + 1)}


def split_ops(s):
    out, depth, cur = [], 0, ""
    for ch in s:
        if ch in "[(":
            depth += 1
        if ch in "])":
            depth -= 1
        if ch == "," and depth == 0:
            out.append(cur.strip())
            cur = ""
        else:
            cur += ch
    if cur.strip():
        out.append(cur.strip())
    return out


class Ins:
    def __init__(self, text, tag=None, cost=None):
        self.text = text.strip()
        self.tag = tag
        self.rd, self.wr = set(), set()
        self.srcc = set()
        self.ab = set()
        self.data = set()
        self.dpp = False
        self.kind = None
        self.parse()
        self.cost = cost if cost is not None else self.default_cost()

    def default_cost(self):
        k = self.kind
        if k in ("label", "waitvm", "waitlgkm", "comment"):
            return 0
        if k == "trans":
            return 8
        if k == "mfma":
            return 8
        if k == "dma":
            return 8
        return 4

    def parse(self):
        t = self.text
        if t.endswith(":"):
            self.kind = "label"
            return
        if t.startswith(";"):
            self.kind = "comment"
            return
        if t.startswith("@waitvm"):
            self.kind = "waitvm"
            self.arg = t.split()[1]
            return
        if t.startswith("@waitlgkm"):
            self.kind = "waitlgkm"
            p = t.split()
            self.arg = p[1] if len(p) > 1 else None
            return
        parts = t.split(None, 1)
        mn = parts[0]
        self.mn = mn
        rest = parts[1] if len(parts) > 1 else ""
        ops = split_ops(rest)
        mods = ""
        if ops:
            lp = ops[-1].split(None, 1)
            ops[-1] = lp[0]
            mods = lp[1] if len(lp) > 1 else ""
        self.ops, self.mods = ops, mods
        R = [regs_of(o) for o in ops]
        U = lambda xs: set().union(*xs) if xs else set()
        if mn.startswith("v_mfma"):
            self.kind = "mfma"
            self.wr = R[0]
            self.ab = R[1] | R[2]
            self.srcc = R[3]
            self.rd = self.ab | self.srcc
            self.passes = 16 if "32x32x2_f32" in mn else (8 if "32x32" in mn else 4)
        elif mn.startswith("ds_read") or mn.startswith("ds_bpermute"):
            self.kind = "ds_r"
            self.wr = R[0]
            self.rd = U(R[1:])
        elif mn.startswith("ds_write"):
            self.kind = "ds_w"
            self.rd = U(R)
        elif mn.startswith("buffer_load") or mn.startswith("global_load"):
            if " lds" in " " + mods or "_lds_" in mn:
                self.kind = "dma"
                self.rd = U(R) | {("s", "m0")}
            else:
                self.kind = "vm_ld"
                self.wr = R[0]
                self.rd = U(R[1:])
        elif mn.startswith("buffer_store"):
            self.kind = "vm_st"
            self.rd = U(R)
            if "x4" in mn or "x3" in mn:
                self.data = R[0]
        elif mn.startswith("buffer_atomic"):
            self.kind = "vm_st"
            self.rd = U(R)
        elif mn in ("s_waitcnt",):
            self.kind = "wait"
        elif mn == "s_barrier":
            self.kind = "barrier"
        elif mn == "s_nop":
            self.kind = "nop"
            self.n = int(ops[0]) + 1
        elif mn.startswith("s_cbranch") or mn == "s_branch" or mn == "s_endpgm" or mn in ("s_sleep", "s_setprio"):
            self.kind = "branch"
            if "vcc" in mn:
                self.rd = {("s", "vcc")}
            if "scc" in mn:
                self.rd = {("s", "scc")}
        elif mn.startswith("s_load") or mn in ("s_memtime", "s_memrealtime"):
            self.kind = "smem"
            self.wr = R[0]
            self.rd = U(R[1:])
        elif mn.startswith("s_cmp") or mn.startswith("s_bitcmp"):
            self.kind = "salu"
            self.rd = U(R)
            self.wr = {("s", "scc")}
        elif mn.startswith("s_"):
            self.kind = "salu"
            self.wr = set(R[0])
            self.rd = U(R[1:])
            if mn.startswith(("s_cselect", "s_addc", "s_subb", "s_cmov")):
                self.rd.add(("s", "scc"))
            if not mn.startswith(("s_mov", "s_mul", "s_cselect", "s_getpc", "s_getreg")):
                self.wr.add(("s", "scc"))
        elif mn.startswith("v_"):
            base = mn.replace("_e32", "").replace("_e64", "").replace("_dpp", "")
            self.kind = "trans" if base in TRANS else "valu"
            self.dpp = "_dpp" in mn
            if base.startswith("v_permlane"):
                self.wr = R[0] | R[1]
                self.rd = R[0] | R[1]
                self.permlane = True
            elif base.startswith(("v_add_co", "v_sub_co", "v_addc_co", "v_subb_co")):
                self.wr = R[0] | R[1]
                self.rd = U(R[2:])
            else:
                self.wr = set(R[0])
                self.rd = U(R[1:])
                if base.startswith(("v_fmac", "v_dot2c")) or self.dpp:
                    self.rd |= R[0]
        else:
            raise ValueError("cannot parse: " + t)

    def is_valu(self):
        return self.kind in ("valu", "trans")


def is_vec(r):
    return r[0] in ("v", "a")


def needed_states(p, c):
    n = 0
    pv = p.is_valu()
    if p.kind == "mfma":
        D = p.wr
        big = {4: 8, 8: 12, 16: 18}[p.passes]
        if c.kind == "mfma":
            if D & c.ab:
                n = max(n, big)
            if D & c.srcc and not (c.srcc == D and c.passes == p.passes):
                n = max(n, big - 2)
            if D & c.wr and not (c.srcc == D and c.passes == p.passes):
                n = max(n, big - 2)
        elif c.is_valu() or c.kind in ("ds_r", "ds_w", "vm_ld", "vm_st", "dma"):
            if D & (c.rd | c.wr):
                n = max(n, big)
        if c.is_valu() and p.srcc & c.wr:
            n = max(n, {4: 3, 8: 7, 16: 15}[p.passes])
        return n
    if pv:
        wv = {r for r in p.wr if is_vec(r)}
        ws = {r for r in p.wr if not is_vec(r)}
        if c.kind == "mfma" and wv & c.rd:
            n = max(n, 2)
        if c.is_valu():
            if p.kind == "trans" and c.kind != "trans" and wv & c.rd:
                n = max(n, 1)
            if c.dpp and wv & c.rd:
                n = max(n, 2)
            if getattr(c, "permlane", False) and wv & c.rd:
                n = max(n, 2)
            if c.mn.startswith(("v_readlane", "v_readfirstlane")) and wv & c.rd:
                n = max(n, 1)
            if ws & c.rd:
                n = max(n, 2)
            if p.mn.startswith("v_dot") and wv & (c.rd | c.wr):
                same = c.mn == p.mn and not (wv & (regs_of(c.ops[1]) | regs_of(c.ops[2])))
                if not same:
                    n = max(n, 3)
        if p.mn.startswith("v_dot") and c.kind in ("ds_w", "vm_st", "mfma") and wv & c.rd:
            n = max(n, 3)
        if c.kind in ("vm_ld", "vm_st", "dma") and ws & c.rd:
            n = max(n, 5)
        if c.kind in ("salu", "smem", "branch") and ws & c.rd:
            n = max(n, 1)
        return n
    if p.kind == "vm_st" and p.data:
        if p.data & c.wr:
            n = max(n, 2)
        return n
    if p.kind == "salu" and ("s", "m0") in p.wr and c.kind == "dma":
        return 1
    return n


def finalize(stream, max_vm=63, verbose=False):
    out = []
    vm = []
    lg = []
    smem = []
    stats = dict(nops=0, waits=0, maxvm=0)

    def emit(i):
        need = 0
        dist = 0
        for p in reversed(out):
            if p.kind in ("label", "comment"):
                continue
            r = needed_states(p, i) - dist
            if r > need:
                need = r
            dist += p.n if p.kind == "nop" else 1
            if dist >= 20:
                break
        while need > 0:
            k = min(need, 8)
            out.append(Ins(f"s_nop {k-1}"))
            stats["nops"] += k
            need -= k
        out.append(i)

    def wait(nvm, nlg):
        parts = []
        if nvm is not None and nvm < len(vm):
            parts.append(f"vmcnt({min(nvm, 63)})")
            del vm[: len(vm) - nvm]
        if nlg is not None and (nlg < len(lg) or (nlg == 0 and smem)):
            if smem:
                nlg = 0
            parts.append(f"lgkmcnt({min(nlg, 15)})")
            del lg[: len(lg) - min(nlg, 15)]
            if nlg == 0:
                smem.clear()
        if parts:
            stats["waits"] += 1
            out.append(Ins("s_waitcnt " + " ".join(parts)))

    for i in stream:
        if i.kind == "waitvm":
            if i.arg == "all":
                wait(0, None)
            else:
                idx = [k for k, p in enumerate(vm) if p.tag == i.arg]
                if idx:
                    wait(len(vm) - 1 - idx[-1], None)
            continue
        if i.kind == "waitlgkm":
            if i.arg is None:
                wait(None, 0)
            else:
                idx = [k for k, p in enumerate(lg) if p.tag == i.arg]
                if idx:
                    wait(None, len(lg) - 1 - idx[-1])
            continue
        if i.kind in ("label", "comment"):
            out.append(i)
            continue
        touch = i.rd | i.wr
        nvm = nlg = None
        for k, p in enumerate(vm):
            if p.wr & touch:
                nvm = len(vm) - 1 - k
        for k, p in enumerate(lg):
            if p.wr & touch:
                nlg = len(lg) - 1 - k
        for p in smem:
            if p.wr & touch:
                nlg = 0
        wait(nvm, nlg)
        if i.kind in ("vm_ld", "vm_st", "dma") and len(vm) >= max_vm:
            wait(max_vm - 1, None)
        if i.kind in ("ds_r", "ds_w") and len(lg) >= 15:
            wait(None, 14)
        emit(i)
        if i.kind in ("vm_ld", "vm_st", "dma"):
            vm.append(i)
            stats["maxvm"] = max(stats["maxvm"], len(vm))
        elif i.kind in ("ds_r", "ds_w"):
            lg.append(i)
        elif i.kind == "smem":
            smem.append(i)
        elif i.kind == "wait":
            m = re.search(r"vmcnt\((\d+)\)", i.text)
            if m:
                n = int(m.group(1))
                del vm[: max(0, len(vm) - n)]
            m = re.search(r"lgkmcnt\((\d+)\)", i.text)
            if m:
                n = int(m.group(1))
                del lg[: max(0, len(lg) - n)]
                if n == 0:
                    smem.clear()
    if verbose:
        print("finalize:", stats, "instrs", len(out))
    return [(x.text if x.kind == "label" else "    " + x.text) for x in out]


class Hold:
    def __init__(self, cond, name=""):
        self.cond, self.name = cond, name


class Group:
    def __init__(self, items):
        self.items = items
        self.cost = sum(x.cost for x in items)


class Call:
    def __init__(self, fn):
        self.fn = fn
        self.cost = 0


def L(text, tag=None):
    return [Ins(l, tag=tag) for l in text.strip().split("\n") if l.strip()]
```

```python
import struct
import sys
from collections import deque

sys.path.insert(0, "gen")
from asmlib import NAME, WS_BYTES, STAMP_OFF, kernel_head, kernel_desc
from sched import Ins, Hold, Group, Call, L, finalize


def f2u(x):
    return struct.unpack("<I", struct.pack("<f", x))[0]


LOG2E = 1.4426950408889634
K0 = -2.0 * 0.7978845608028654 * LOG2E
K1 = K0 * 0.044715
EPS = 1e-6

FLAG_OFF = 0
G_OFF = 4096
Z_OFF = 16384
KV_OFF = 131072
A_OFF = 1 << 20
OOB = 0x7FFF0000

NSLOT = 9
SLOT = 16384
SCR = NSLOT * SLOT
LDS_BYTES = 163840

sT0, sW, sM0, sXoff, sColA, sCol1, sCol2, sCol3 = 3, 4, 5, 6, 7, 8, 9, 10
sSt0, sSt1, sFlag, sPoll, sA2 = 11, 12, 13, 14, 15
sK0 = 16
sMask = 24
sT1, sT2 = 26, 27
SX, SX2, SA0, SA1, SG, SU, SWS, SD, SD2, SO, SO2, SOUT, SDBG = 28, 32, 36, 40, 44, 48, 52, 56, 60, 64, 68, 72, 76
pOUT, pDBG, pX, pQKV, pWO, pBX, pWG, pWU, pWD, pGW, pWS = 80, 82, 84, 86, 88, 90, 92, 94, 96, 98, 100
sRotA, sRotB = 80, 84
sW2, sKV, sZ, sGst, sOut, sT3, sT4, sSpin, sE0, sE1 = 88, 89, 90, 91, 92, 93, 94, 95, 96, 97
sSt = 100

vL16, vD0, vD1, vG0, vG1, vP0, vP1 = 1, 2, 3, 4, 5, 6, 7
vW, vWh, vQ = 8, 11, 14
vK1, vFlag, vPollA, vPoll, vKvp, vZst, vGst = 20, 21, 22, 23, 24, 25, 26
vg, vom, vStamp = 27, 29, 31
vFR = 32
vT = 64
ACC = (128, 192)


def v(a, n=1):
    return f"v{a}" if n == 1 else f"v[{a}:{a+n-1}]"


def a_(a, n=1):
    return f"a{a}" if n == 1 else f"a[{a}:{a+n-1}]"


def s(a, n=1):
    return f"s{a}" if n == 1 else f"s[{a}:{a+n-1}]"


MF = "v_mfma_f32_32x32x16_bf16"


class Cfg:
    stamps = False
    LA = 2
    budget = 24
    sig1, sig2, sig3 = 8, 6, 2
    kvp0, kvp1 = 4, 4
    p10, p11, p20, p21, p30, p31 = 4, 4, 1, 2, 2, 3
    out_sc1 = False
    code_pf = True
    rot = True
    spin_max = 400000

    def __init__(self, **kw):
        for k, x in kw.items():
            assert hasattr(Cfg, k), k
            setattr(self, k, x)


class Body:
    def __init__(self, typ, cfg):
        self.typ, self.cfg = typ, cfg
        self.out = []
        self.retry = []
        self.mem = deque()
        self.epi = deque()
        self.ctl = deque()
        self.owner = {}
        self.nbar = 0
        self.t = -1
        self.stamp_names = []
        self.marks = set()
        self.nfill1 = 28 if typ == "A" else 32
        self.nfill = self.nfill1 + 18
        self.next_fill = 0
        self.free_upto = NSLOT
        self.xwin = 0

    def e(self, x, tag=None):
        if isinstance(x, str):
            self.out += L(x, tag)
        elif isinstance(x, Group):
            self.out += x.items
        elif isinstance(x, list):
            for y in x:
                self.e(y)
        else:
            self.out.append(x)

    def stamp_ins(self, name):
        if not self.cfg.stamps:
            return []
        self.stamp_names.append(name)
        k = len(self.stamp_names)
        assert k < 31
        return [Group(L(f"s_memtime {s(sSt,2)}\nv_writelane_b32 {v(vStamp)}, {s(sSt)}, {k}"))]

    def stamp(self, name):
        self.e(self.stamp_ins(name))

    def pull(self, q, budget):
        used = 0
        while q:
            it = q[0]
            if isinstance(it, Hold):
                if not it.cond():
                    break
                q.popleft()
                continue
            if isinstance(it, Call):
                q.popleft()
                it.fn()
                continue
            if used + it.cost > budget and not (used == 0 and budget >= 4):
                break
            q.popleft()
            self.e(it)
            used += it.cost
        return used

    def flush(self, q, mark):
        while mark not in self.marks:
            it = q.popleft()
            if isinstance(it, Hold):
                if it.name.startswith("mark ") and not it.cond():
                    self.need(it.name[5:])
                assert it.name == "time" or it.cond(), ("flush across hold", it.name, mark)
                continue
            if isinstance(it, Call):
                it.fn()
                continue
            self.e(it)

    def need(self, mark):
        self.flush(self.owner[mark], mark)

    def mark(self, q, name):
        self.owner[name] = q
        q.append(Call(lambda: self.marks.add(name)))

    def hold_steps(self, q, n):
        st = {}
        q.append(Call(lambda: st.__setitem__("t", self.t)))
        q.append(Hold(lambda: self.t >= st["t"] + n, "time"))

    def hold_bar(self, q):
        st = {}
        q.append(Call(lambda: st.__setitem__("b", self.nbar)))
        q.append(Hold(lambda: self.nbar > st["b"], "bar"))

    def hold_after_step(self, q, t):
        q.append(Hold(lambda: self.t > t, "step"))

    def hold_mark(self, q, m):
        q.append(Hold(lambda: m in self.marks, "mark " + m))

    def gap(self, used, budget=None):
        b = (budget or self.cfg.budget) - used
        self.queue_fills()
        b -= self.pull(self.mem, max(b, 0))
        if b > 0:
            b -= self.pull(self.ctl, b)
        if b > 0:
            self.pull(self.epi, b)

    def fill_ins(self, n):
        slot = (n % NSLOT) * SLOT
        tag = f"F{n}"
        pre = []
        if n < 16 and n % 2 == 0:
            j = n // 2
            pre = L(f"s_lshl_b32 {s(sT1)}, {s(sK0+j)}, 1\ns_add_u32 {s(sT1)}, {s(sT1)}, {s(sXoff)}")
            ops = [(vT, SX, sT1), (vT + 1, SX, sT1), (vT, SX2, sT1), (vT + 1, SX2, sT1)]
        elif n < self.nfill1:
            if n < 16:
                p, j = 0, n // 2
            else:
                p, j = 1 + (n - 16) // 8, (n - 16) % 8
            if self.typ == "A" and p == 0:
                pre = L(f"""s_mul_i32 {s(sT1)}, {s(sK0+j)}, 3072
                    s_add_u32 {s(sT1)}, {s(sT1)}, {s(sColA)}
                    s_add_u32 {s(sT2)}, {s(sT1)}, 2048
                    s_add_u32 {s(sT1)}, {s(sT1)}, 1024""")
                ops = [(vD0, SA0, sT1), (vD1, SA0, sT1), (vD0, SA1, sT2), (vD1, SA1, sT2)]
            elif self.typ == "A" and p == 2:
                pre = L(f"""s_mul_i32 {s(sT1)}, {s(sK0+2*j)}, 3072
                    s_mul_i32 {s(sT2)}, {s(sK0+2*j+1)}, 3072
                    s_add_u32 {s(sT1)}, {s(sT1)}, {s(sColA)}
                    s_add_u32 {s(sT2)}, {s(sT2)}, {s(sColA)}""")
                ops = [(vD0, SA0, sT1), (vD1, SA0, sT1), (vD0, SA1, sT2), (vD1, SA1, sT2)]
            else:
                col = (sCol1, sCol2, sCol3)[p]
                pre = L(f"s_mul_i32 {s(sT1)}, {s(sK0+j)}, 3584\ns_add_u32 {s(sT1)}, {s(sT1)}, {s(col)}")
                ops = [(vG0, SG, sT1), (vG1, SG, sT1), (vG0, SU, sT1), (vG1, SU, sT1)]
        else:
            u = n - self.nfill1
            pre = self.unit_f(u, sT1) + L(f"s_lshl_b32 {s(sT1)}, {s(sT1)}, 10\ns_add_u32 {s(sT1)}, {s(sT1)}, {s(sW2)}")
            d0, d1 = (SD, SD2) if u < 14 else (SO, SO2)
            ops = [(vP0, d0, sT1), (vP1, d0, sT1), (vP0, d1, sT1), (vP1, d1, sT1)]
        pre += L(f"s_add_u32 m0, {s(sM0)}, {slot}")
        items = []
        for i, (vo, srd, so) in enumerate(ops):
            off = f" offset:{1024*i}" if i else ""
            items.append(Ins(f"buffer_load_dwordx4 {v(vo)}, {s(srd,4)}, {s(so)} offen{off} lds", tag=tag))
        return [Group(pre + items[:1])] + [Group([x]) for x in items[1:]]

    def unit_f(self, u, dst):
        if u < 4:
            return L(f"s_mov_b32 {s(dst)}, {s(sRotA+u)}")
        if u < 8:
            return L(f"s_add_u32 {s(dst)}, {s(sRotA+u-4)}, 64")
        if u < 12:
            return L(f"s_add_u32 {s(dst)}, {s(sRotB+u-8)}, 1280")
        if u < 14:
            return L(f"s_mul_i32 {s(dst)}, {s(sW)}, 320\ns_add_u32 {s(dst)}, {s(dst)}, {128+32*(u-12)}")
        return L(f"s_mov_b32 {s(dst)}, {s(sRotB+u-14)}")

    def queue_fills(self):
        while self.next_fill < min(self.free_upto, self.nfill):
            for g in self.fill_ins(self.next_fill):
                self.mem.append(g)
            self.next_fill += 1

    def areg(self, u):
        u %= 16
        if self.typ == "B":
            return 128 + 16 * u if u < 8 else 16 * (u - 8)
        j, p = u >> 2, u & 3
        return (p >> 1) * 128 + 32 * j + (p & 1) * 16

    def aload_ins(self, u):
        pre = self.unit_f(u, sT3)
        if u >= 14:
            pre += L(f"s_add_u32 {s(sT3)}, {s(sT3)}, 1792")
        pre += L(f"s_lshl_b32 {s(sT3)}, {s(sT3)}, 7\ns_add_u32 {s(sT3)}, {s(sT3)}, {s(sA2)}")
        items = []
        for i in range(4):
            off = f" offset:{1024*i}" if i else ""
            items.append(Ins(f"buffer_load_dwordx4 {a_(self.areg(u)+4*i,4)}, {v(vL16)}, {s(SWS,4)}, {s(sT3)} offen{off} sc1"))
        return [Group(pre + items[:1])] + [Group([x]) for x in items[1:]]

    def poll_load(self, voff, soff, srd=SWS):
        return Ins(f"buffer_load_dword {v(vPoll)}, {v(voff)}, {s(srd,4)}, {soff} offen sc1")

    def poll_check(self, voff, soff, want, srd=SWS):
        k = len(self.retry)
        lab = f"L{self.typ}_poll{k}"
        self.retry.append(f"""{lab}_retry:
    s_mov_b32 {s(sSpin)}, 0
{lab}_loop:
    s_sleep 4
    buffer_load_dword {v(vPoll)}, {v(voff)}, {s(srd,4)}, {soff} offen sc1
    s_add_u32 {s(sSpin)}, {s(sSpin)}, 1
    s_cmp_ge_u32 {s(sSpin)}, {self.cfg.spin_max}
    s_waitcnt vmcnt(0)
    s_cbranch_scc1 {lab}_ok
    v_cmp_gt_u32 vcc, {want}, {v(vPoll)}
    s_nop 1
    s_cbranch_vccnz {lab}_loop
    s_branch {lab}_ok""")
        return Group(L(f"v_cmp_gt_u32 vcc, {want}, {v(vPoll)}\ns_cbranch_vccnz {lab}_retry\n{lab}_ok:"))

    def signal(self, q, stage, tag, delay):
        self.hold_mark(q, f"e{stage}")
        self.hold_steps(q, delay)
        q.append(Group(L(f"v_mov_b32 {v(vPoll)}, {stage}\n@waitvm {tag}") +
                       L(f"buffer_store_dword {v(vPoll)}, {v(vFlag)}, {s(SWS,4)}, {s(sFlag)} offen sc1")))
        q.extend(self.stamp_ins(f"sig{stage}"))
        self.mark(q, f"sig{stage}")

    def gelu_block(self, G, U, soff, tag, T):
        r = []
        for b in range(4):
            idx = range(4 * b, 4 * b + 4)
            t = lambda i: T + (i & 7)
            r += [Ins(f"v_mul_f32 {v(t(i))}, {v(G+i)}, {v(G+i)}") for i in idx]
            r += [Ins(f"v_fmaak_f32 {v(t(i))}, {v(vK1)}, {v(t(i))}, {f2u(K0):#x}") for i in idx]
            r += [Ins(f"v_mul_f32 {v(t(i))}, {v(t(i))}, {v(G+i)}") for i in idx]
            r += [Ins(f"v_exp_f32 {v(t(i))}, {v(t(i))}") for i in idx]
            r += [Ins(f"v_mul_f32 {v(U+i)}, {v(G+i)}, {v(U+i)}") for i in idx]
            r += [Ins(f"v_add_f32 {v(t(i))}, 1.0, {v(t(i))}") for i in idx]
            r += [Ins(f"v_rcp_f32 {v(t(i))}, {v(t(i))}") for i in idx]
            r += [Ins(f"v_mul_f32 {v(U+i)}, {v(U+i)}, {v(t(i))}") for i in idx]
            r += [Ins(f"v_cvt_pk_bf16_f32 {v(G+2*b+k)}, {v(U+4*b+2*k)}, {v(U+4*b+2*k+1)}") for k in range(2)]
            if b & 1:
                hf = b >> 1
                off = " offset:2048" if hf else ""
                r.append(Ins(f"buffer_store_dwordx4 {v(G+4*hf,4)}, {v(vL16)}, {s(SWS,4)}, {s(soff)} offen{off} sc1", tag=tag))
        return r

    def phi_block(self, X, T):
        r = []
        for b in range(4):
            idx = range(4 * b, 4 * b + 4)
            t = lambda i: T + (i & 7)
            r += [Ins(f"v_mul_f32 {v(t(i))}, {f2u(LOG2E):#x}, {v(X+i)}") for i in idx]
            r += [Ins(f"v_exp_f32 {v(t(i))}, {v(t(i))} clamp") for i in idx]
            r += [Ins(f"v_max_f32 {v(X+i)}, {f2u(EPS):#x}, {v(X+i)}") for i in idx]
            r += [Ins(f"v_add_f32 {v(X+i)}, {v(X+i)}, {v(t(i))}") for i in idx]
            r += [Ins(f"v_cvt_pk_bf16_f32 {v(X+2*b+k)}, {v(X+4*b+2*k)}, {v(X+4*b+2*k+1)}") for k in range(2)]
        return r

    def gu_epilogue(self, q, acc, col, tag, half=False):
        T = vT + 56
        q.append(Group(L(f"""s_lshl_b32 {s(sE1)}, {s(col)}, 6
            s_add_u32 {s(sE0)}, {s(sE1)}, {s(sSt0)}
            s_add_u32 {s(sE1)}, {s(sE1)}, {s(sSt1)}""")))
        if half:
            q.append(Ins(f"s_add_u32 {s(sE0)}, {s(sE0)}, {s(sT4)}"))
            q.extend(self.gelu_block(acc, acc + 32, sE0, tag, T))
        else:
            q.extend(self.gelu_block(acc, acc + 32, sE0, tag, T))
            q.extend(self.gelu_block(acc + 16, acc + 48, sE1, tag, T))

    def g_compute(self, q):
        X0, X1, GW, R0, R1 = vT + 12, vT + 16, vT + 20, vT + 24, vT + 25
        r = []
        r += L(f"v_mov_b32 {v(R0)}, 0\nv_mov_b32 {v(R1)}, 0")
        for i in range(4):
            r += L(f"v_dot2c_f32_bf16 {v(R0)}, {v(X0+i)}, {v(GW+i)}\nv_dot2c_f32_bf16 {v(R1)}, {v(X1+i)}, {v(GW+i)}")
        r += L(f"""v_permlane32_swap_b32 {v(R0)}, {v(R1)}
            v_add_f32 {v(R0)}, {v(R0)}, {v(R1)}
            v_add_f32_dpp {v(R0)}, {v(R0)}, {v(R0)} quad_perm:[1,0,3,2] row_mask:0xf bank_mask:0xf
            v_add_f32_dpp {v(R0)}, {v(R0)}, {v(R0)} quad_perm:[2,3,0,1] row_mask:0xf bank_mask:0xf
            v_add_f32_dpp {v(R0)}, {v(R0)}, {v(R0)} row_half_mirror row_mask:0xf bank_mask:0xf
            v_add_f32_dpp {v(R0)}, {v(R0)}, {v(R0)} row_mirror row_mask:0xf bank_mask:0xf
            v_mov_b32 {v(R1)}, {v(R0)}
            v_permlane16_swap_b32 {v(R0)}, {v(R1)}
            v_add_f32 {v(R0)}, {v(R0)}, {v(R1)}
            v_mul_f32 {v(R0)}, {f2u(-LOG2E):#x}, {v(R0)}
            v_exp_f32 {v(R0)}, {v(R0)}
            v_add_f32 {v(R0)}, 1.0, {v(R0)}
            v_rcp_f32 {v(R0)}, {v(R0)}""")
        r += L(f"buffer_store_dword {v(R0)}, {v(vGst)}, {s(SWS,4)}, {s(sGst)} offen sc1", tag="st1")
        q.extend(r)

    def kv_epilogue(self, q):
        acc = ACC[0]
        D2, DZ, ONE, T, AD = vT, vT + 16, vT + 32, vT + 56, vT + 36
        for i in range(4):
            q.append(Ins(f"v_mov_b32 {v(ONE+i)}, 0x3f803f80"))
        first = True
        for j in range(2):
            K, V = acc + 16 * j, acc + 32 + 16 * j
            q.extend([Ins(f"v_cvt_pk_bf16_f32 {v(V+k)}, {v(V+2*k)}, {v(V+2*k+1)}") for k in range(8)])
            q.extend(self.phi_block(K, T))
            for hf in range(2):
                c2, cz = ("0", "0") if first else (v(D2, 16), v(DZ, 16))
                first = False
                q.append(Ins(f"{MF} {v(D2,16)}, {v(K+4*hf,4)}, {v(V+4*hf,4)}, {c2}", cost=32))
                q.append(Ins(f"{MF} {v(DZ,16)}, {v(ONE,4)}, {v(K+4*hf,4)}, {cz}", cost=32))
        q.extend(L(f"""s_lshl_b32 {s(sE0)}, {s(sW)}, 11
            s_add_u32 {s(sE0)}, {s(sE0)}, {SCR}
            v_add_u32 {v(AD)}, {s(sE0)}, {v(vL16)}
            s_and_b32 {s(sE0)}, {s(sW)}, 1
            s_lshl_b32 {s(sE0)}, {s(sE0)}, 11
            s_lshr_b32 {s(sE1)}, {s(sW)}, 1
            s_lshl_b32 {s(sE1)}, {s(sE1)}, 10
            s_add_u32 {s(sE0)}, {s(sE0)}, {s(sE1)}
            s_add_u32 {s(sE0)}, {s(sE0)}, {SCR}
            v_add_u32 {v(AD+1)}, {s(sE0)}, {v(vL16)}"""))
        for i in range(8):
            q.append(Ins(f"v_cndmask_b32 {v(D2+i)}, {v(D2+8+i)}, {v(D2+i)}, {s(sMask,2)}"))
        q.extend(L(f"""ds_write_b128 {v(AD)}, {v(D2,4)}
            ds_write_b128 {v(AD)}, {v(D2+4,4)} offset:1024"""))
        q.extend(L(f"buffer_store_dword {v(DZ)}, {v(vZst)}, {s(SWS,4)}, {s(sZ)} offen sc1", tag="st1"))
        self.hold_bar(q)
        q.extend(L(f"""ds_read_b128 {v(D2,4)}, {v(AD+1)}
            ds_read_b128 {v(D2+4,4)}, {v(AD+1)} offset:4096"""))
        self.hold_steps(q, 1)
        for i in range(4):
            q.append(Ins(f"v_add_f32 {v(D2+i)}, {v(D2+i)}, {v(D2+4+i)}"))
        q.extend(L(f"buffer_store_dwordx4 {v(D2,4)}, {v(vL16)}, {s(SWS,4)}, {s(sKV)} offen sc1", tag="st1"))

    def kv_gather_plan(self):
        self.kvdst = [vT + 4 * i for i in range(8)] + [ACC[0] + 32 + 4 * i for i in range(8)]

    def kv_gather_loads(self, q):
        dst = self.kvdst
        q.append(Group(L(f"s_and_b32 {s(sT3)}, {s(sKV)}, {(~16383) & 0xffffffff:#x}")))
        for i in range(16):
            if i and i % 4 == 0:
                q.append(Ins(f"s_add_u32 {s(sT3)}, {s(sT3)}, 4096"))
            off = f" offset:{1024*(i%4)}" if i % 4 else ""
            q.append(Ins(f"buffer_load_dwordx4 {v(dst[i],4)}, {v(vL16)}, {s(SWS,4)}, {s(sT3)} offen{off} sc1"))
        Z = vT + 32
        q.extend(L(f"""s_and_b32 {s(sT3)}, {s(sZ)}, {(~2047) & 0xffffffff:#x}
            v_lshrrev_b32 {v(Z+8)}, 2, {v(vL16)}"""))
        for i in range(8):
            off = f" offset:{256*i}" if i else ""
            q.append(Ins(f"buffer_load_dword {v(Z+i)}, {v(Z+8)}, {s(SWS,4)}, {s(sT3)} offen{off} sc1"))

    def kv_gather_sum(self, q):
        dst, Z = self.kvdst, vT + 32
        AD = vT + 44
        S2 = SCR + 8192
        q.extend(L(f"""s_and_b32 {s(sE0)}, {s(sW)}, 1
            s_lshl_b32 {s(sE0)}, {s(sE0)}, 11
            s_add_u32 {s(sE0)}, {s(sE0)}, {S2}
            v_add_u32 {v(AD+1)}, {s(sE0)}, {v(vL16)}
            s_lshr_b32 {s(sE1)}, {s(sW)}, 1
            s_lshl_b32 {s(sE1)}, {s(sE1)}, 3
            v_add_u32 {v(AD)}, {s(sE1)}, {v(AD+1)}
            s_lshl_b32 {s(sE1)}, {s(sE1)}, 5
            s_add_u32 {s(sE1)}, {s(sE1)}, {s(sE0)}
            s_add_u32 {s(sE1)}, {s(sE1)}, 1024
            v_lshrrev_b32 {v(AD+2)}, 2, {v(vL16)}
            v_add_u32 {v(AD+2)}, {s(sE1)}, {v(AD+2)}"""))
        q.extend(L(f"""v_lshrrev_b32 {v(AD+3)}, 2, {v(vL16)}
            v_and_b32 {v(AD+3)}, 64, {v(AD+3)}
            v_xor_b32 {v(AD+3)}, 64, {v(AD+3)}
            v_lshrrev_b32 {v(AD+4)}, 5, {v(vL16)}
            v_and_b32 {v(AD+4)}, 16, {v(AD+4)}
            s_add_u32 {s(sE0)}, {s(sE0)}, 1024
            v_add3_u32 {v(AD+3)}, {v(AD+3)}, {v(AD+4)}, {s(sE0)}"""))
        for i in range(1, 16):
            for k in range(4):
                q.append(Ins(f"v_add_f32 {v(dst[0]+k)}, {v(dst[0]+k)}, {v(dst[i]+k)}"))
        for i in range(1, 8):
            q.append(Ins(f"v_add_f32 {v(Z)}, {v(Z)}, {v(Z+i)}"))
        q.extend(L(f"""v_cvt_pk_bf16_f32 {v(dst[0])}, {v(dst[0])}, {v(dst[0]+1)}
            v_cvt_pk_bf16_f32 {v(dst[0]+1)}, {v(dst[0]+2)}, {v(dst[0]+3)}
            v_mov_b32 {v(Z+1)}, {v(Z)}
            ds_write_b64 {v(AD)}, {v(dst[0],2)}
            v_permlane32_swap_b32 {v(Z)}, {v(Z+1)}
            v_add_f32 {v(Z)}, {v(Z)}, {v(Z+1)}
            ds_write_b32 {v(AD+2)}, {v(Z)}"""))
        self.mark(q, "kvsum")

    def q_epilogue(self, q):
        acc = ACC[0]
        AD = vT + 44
        KV, Z0, Z1, A0, A1, T = vT, vT + 4, vT + 12, vT + 20, vT + 24, vT + 56
        D3 = (acc + 32, acc + 48)
        q.extend(L(f"""ds_read_b128 {v(KV,4)}, {v(AD+1)}
            ds_read_b128 {v(Z0,4)}, {v(AD+3)}
            ds_read_b128 {v(Z0+4,4)}, {v(AD+3)} offset:32
            ds_read_b128 {v(Z1,4)}, {v(AD+3)} offset:256
            ds_read_b128 {v(Z1+4,4)}, {v(AD+3)} offset:288"""))
        q.extend(self.phi_block(acc, T))
        for i in range(8):
            q.append(Ins(f"v_add_f32 {v(Z0+i)}, {v(Z0+i)}, {v(Z1+i)}"))
        for k in range(4):
            q.append(Ins(f"v_cvt_pk_bf16_f32 {v(Z0+k)}, {v(Z0+2*k)}, {v(Z0+2*k+1)}"))
        for k in range(4):
            q.append(Ins(f"v_cndmask_b32 {v(A0+k)}, {v(Z0+k)}, {v(KV+k)}, {s(sMask,2)}"))
            q.append(Ins(f"v_cndmask_b32 {v(A1+k)}, {v(KV+k)}, {v(Z0+k)}, {s(sMask,2)}"))
        q.append(Group(L(f"""s_lshl_b32 {s(sE1)}, {s(sColA)}, 6
            s_add_u32 {s(sE1)}, {s(sE1)}, {1792*128}
            s_add_u32 {s(sE0)}, {s(sE1)}, {s(sSt0)}
            s_add_u32 {s(sE1)}, {s(sE1)}, {s(sSt1)}""")))

        def mf(j):
            Q = acc + 16 * j
            return [Ins(f"{MF} {v(D3[0],16)}, {v(A0,4)}, {v(Q,4)}, 0", cost=32),
                    Ins(f"{MF} {v(D3[1],16)}, {v(A1,4)}, {v(Q+4,4)}, 0", cost=32)]

        def fin(j):
            Q = acc + 16 * j
            r = []
            for hh in range(2):
                den = D3[hh] + (8 if hh == 0 else 0)
                r.append(Ins(f"v_add_f32 {v(T+hh)}, {f2u(EPS):#x}, {v(den)}"))
            for hh in range(2):
                r.append(Ins(f"v_rcp_f32 {v(T+hh)}, {v(T+hh)}"))
            for hh in range(2):
                num = D3[hh] + (0 if hh == 0 else 8)
                r += [Ins(f"v_mul_f32 {v(num+i)}, {v(num+i)}, {v(T+hh)}") for i in range(8)]
                r += [Ins(f"v_cvt_pk_bf16_f32 {v(Q+8+4*hh+k)}, {v(num+2*k)}, {v(num+2*k+1)}") for k in range(4)]
                off = " offset:2048" if hh else ""
                r.append(Ins(f"buffer_store_dwordx4 {v(Q+8+4*hh,4)}, {v(vL16)}, {s(SWS,4)}, {s((sE0, sE1)[j])} offen{off} sc1", tag="st3"))
            return r

        q.extend(mf(0))
        q.extend(self.phi_block(acc + 16, T))
        q.extend(fin(0))
        q.extend(mf(1))
        self.hold_steps(q, 1)
        q.extend(fin(1))

    def build_steps(self):
        steps = []

        def trw(base, fill, sub, fr):
            addr = (fill % NSLOT) * SLOT + sub
            w, imm = addr >> 16, addr & 0xFFFF
            return [Ins(f"ds_read_b64_tr_b16 {v(fr,2)}, {v(base+w)} offset:{imm}"),
                    Ins(f"ds_read_b64_tr_b16 {v(fr+2,2)}, {v(base+w)} offset:{imm+512}")]

        def xreads(fill, sidx, ks):
            addr = (fill % NSLOT) * SLOT
            w, imm = addr >> 16, addr & 0xFFFF
            r = []
            if w != self.xwin:
                d = (w - self.xwin) * 65536
                for i in range(8):
                    if d > 0:
                        r.append(Ins(f"v_add_u32 {v(vT+2+i)}, {d:#x}, {v(vT+2+i)}"))
                    else:
                        r.append(Ins(f"v_subrev_u32 {v(vT+2+i)}, {-d:#x}, {v(vT+2+i)}"))
                self.xwin = w
            for j in range(2):
                r.append(Ins(f"ds_read_b128 {a_(128*j+4*ks,4)}, {v(vT+2+2*sidx+j)} offset:{imm}"))
            return r

        def mfma(d, wf, xf, first, trans=True):
            c = "0" if first else v(d, 16)
            A, B = (v(wf, 4), a_(xf, 4)) if trans else (a_(xf, 4), v(wf, 4))
            return Ins(f"{MF} {v(d,16)}, {A}, {B}, {c}")

        for p in range(2):
            acc = ACC[p]
            trans = not (self.typ == "A" and p == 0)
            for j in range(8):
                fill = 2 * j + 1 if p == 0 else 16 + j
                for sidx in range(4):
                    ks = 4 * j + sidx

                    def reads(fr, p=p, fill=fill, sidx=sidx, ks=ks):
                        r = []
                        if p == 0:
                            r += xreads(fill - 1, sidx, ks)
                        r += trw(vW, fill, sidx * 4096, fr) + trw(vW, fill, sidx * 4096 + 2048, fr + 4)
                        return r

                    def mfs(fr, acc=acc, ks=ks, trans=trans):
                        return [mfma(acc + 32 * t + 16 * jj, fr + 4 * t, 128 * jj + 4 * ks, ks == 0, trans)
                                for t in range(2) for jj in range(2)]

                    steps.append(dict(reads=reads, mf=mfs, bar=fill if sidx == 0 else None, first=(fill - 1 if p == 0 else fill), ph=p))
        acc = ACC[0]
        if self.typ == "A":
            for j in range(4):
                fill = 24 + j
                for sidx in range(4):
                    def reads(fr, fill=fill, sidx=sidx):
                        return trw(vW, fill, sidx * 4096, fr) + trw(vW, fill, sidx * 4096 + 2048, fr + 4)

                    def mfs(fr, j=j, sidx=sidx):
                        return [mfma(acc + 16 * jj, fr + 4 * m, 128 * jj + 4 * (8 * j + 4 * m + sidx), j == 0 and sidx == 0 and m == 0)
                                for m in range(2) for jj in range(2)]

                    steps.append(dict(reads=reads, mf=mfs, bar=fill if sidx == 0 else None, first=fill, ph=2))
        else:
            for j in range(8):
                fill = 24 + j
                for sidx in range(4):
                    ks = 4 * j + sidx

                    def reads(fr, fill=fill, sidx=sidx):
                        return trw(vWh, fill, sidx * 4096, fr) + trw(vWh, fill, sidx * 4096 + 2048, fr + 4)

                    def mfs(fr, ks=ks):
                        return [mfma(acc + 32 * t, fr + 4 * t, 4 * ks, ks == 0) for t in range(2)]

                    steps.append(dict(reads=reads, mf=mfs, bar=fill if sidx == 0 else None, first=fill, ph=2))
        self.n1 = len(steps)
        for u in range(18):
            fill = self.nfill1 + u
            addr = (fill % NSLOT) * SLOT
            w, imm = addr >> 16, addr & 0xFFFF
            acc = ACC[1] if u < 14 else ACC[0]
            for k in range(2):
                def reads(fr, w=w, imm=imm, k=k):
                    r = []
                    for t in range(2):
                        r.append(Ins(f"ds_read_b64_tr_b16 {v(fr+4*t,2)}, {v(vQ+3*t+w)} offset:{imm+2048*k}"))
                        r.append(Ins(f"ds_read_b64_tr_b16 {v(fr+4*t+2,2)}, {v(vQ+3*t+w)} offset:{imm+2048*k+1024}"))
                    return r

                def mfs(fr, u=u, k=k, acc=acc):
                    first = k == 0 and u in (0, 14)
                    return [mfma(acc + 32 * t + 16 * rb, fr + 4 * t, self.areg(u) + 8 * k + 4 * rb, first)
                            for t in range(2) for rb in range(2)]

                steps.append(dict(reads=reads, mf=mfs, bar=None, own=fill if k == 0 else None, frees=fill if k == 1 else None, ph=3, u=u, k=k))
        self.steps = steps

    def barrier(self, fill=None, first=None):
        if fill is not None:
            self.e(f"@waitvm F{fill}")
        self.e("@waitlgkm\ns_barrier")
        self.nbar += 1
        if first is not None:
            self.free_upto = max(self.free_upto, first + NSLOT)

    def issue_reads(self, t):
        st = self.steps[t]
        if st.get("bar") is not None:
            self.flush_mem_upto(st["bar"])
            self.barrier(st["bar"], st["first"])
        if t == self.n1:
            if self.typ == "A":
                self.need("kvsum")
            self.barrier(None, self.nfill1)
            self.marks.add("endbar")
            self.stamp("endbar")
        if st.get("own") is not None:
            self.flush_mem_upto(st["own"])
            self.e(f"@waitvm F{st['own']}")
        return st["reads"](vFR + 8 * (t % 4))

    def flush_mem_upto(self, fill):
        self.queue_fills()
        tag = f"F{fill}"
        assert self.next_fill > fill, (fill, self.next_fill)

        def pending():
            for it in self.mem:
                if isinstance(it, Group) and any(x.tag == tag for x in it.items):
                    return True
            return False
        while pending():
            it = self.mem.popleft()
            if isinstance(it, Hold):
                assert it.name == "time" or it.cond(), ("mem flush across hold", it.name, fill)
                continue
            if isinstance(it, Call):
                it.fn()
                continue
            self.e(it)

    def plan_side_streams(self):
        cfg, epi, ctl, typ = self.cfg, self.epi, self.ctl, self.typ
        n1 = self.n1

        def aloads(us):
            for u in us:
                ctl.extend(self.aload_ins(u))

        def gloads():
            ctl.extend(L(f"""s_lshl_b32 {s(sT3)}, {s(sPoll)}, 1
                s_add_u32 {s(sT3)}, {s(sT3)}, {G_OFF}
                buffer_load_dword {v(vg)}, {v(vPollA)}, {s(SWS,4)}, {s(sT3)} offen sc1
                buffer_load_dword {v(vg+1)}, {v(vPollA)}, {s(SWS,4)}, {s(sT3)} offen offset:128 sc1"""))

        def poll(voff, soff, want, name, d0, d1, srd=SWS):
            self.hold_steps(ctl, d0)
            ctl.append(self.poll_load(voff, soff, srd))
            self.hold_steps(ctl, d1)
            ctl.append(self.poll_check(voff, soff, want, srd))
            ctl.extend(self.stamp_ins(name))

        self.hold_after_step(epi, 8)
        self.g_compute(epi)
        self.mark(epi, "g")
        self.hold_after_step(epi, 31)
        epi.extend(self.stamp_ins("pass1"))
        if typ == "A":
            self.kv_epilogue(epi)
        else:
            self.gu_epilogue(epi, ACC[0], sCol1, "st1")
        epi.extend(self.stamp_ins("e1"))
        self.mark(epi, "e1")
        self.hold_after_step(epi, 63)
        epi.extend(self.stamp_ins("pass2"))
        self.gu_epilogue(epi, ACC[1], sCol2, "st2")
        epi.extend(self.stamp_ins("e2"))
        self.mark(epi, "e2")
        if typ == "A":
            self.kv_gather_plan()
            self.hold_mark(epi, "kvld")
            self.kv_gather_sum(epi)
            self.hold_mark(epi, "endbar")
        self.hold_after_step(epi, n1 - 1)
        if typ == "A":
            self.q_epilogue(epi)
        else:
            self.gu_epilogue(epi, ACC[0], sCol3, "st3", half=True)
        epi.extend(self.stamp_ins("e3"))
        self.mark(epi, "e3")
        self.hold_after_step(ctl, 20)
        poll(vPollA, "0", 1, "init", 0, 8, SDBG)
        self.mark(ctl, "init")
        self.signal(ctl, 1, "st1", cfg.sig1)
        if typ == "A":
            poll(vKvp, "0", 1, "kvpoll", cfg.kvp0, cfg.kvp1)
            self.hold_after_step(ctl, 63)
            self.kv_gather_loads(ctl)
            self.mark(ctl, "kvld")
        poll(vPollA, s(sPoll), 1, "poll1", cfg.p10 if typ == "B" else 0, cfg.p11)
        self.hold_after_step(ctl, 64 + 3 if typ == "A" else 63)
        aloads(range(0, 4))
        gloads()
        self.mark(ctl, "a0")
        self.signal(ctl, 2, "st2", cfg.sig2)
        poll(vPollA, s(sPoll), 2, "poll2", cfg.p20, cfg.p21)
        self.hold_after_step(ctl, n1 - 1)
        aloads(range(4, 12))
        self.mark(ctl, "a4")
        self.signal(ctl, 3, "st3", cfg.sig3)
        poll(vPollA, s(sPoll), 3, "poll3", cfg.p30, cfg.p31)
        aloads(range(12, 16))
        self.hold_after_step(ctl, n1 + 3)
        aloads(range(16, 18))
        self.mark(ctl, "a12")
        self.hold_mark(epi, "a0")
        epi.extend(L(f"v_sub_f32 {v(vom)}, 1.0, {v(vg)}\nv_sub_f32 {v(vom+1)}, 1.0, {v(vg+1)}"))
        AD = vT
        epi.extend(L(f"""v_lshrrev_b32 {v(AD+8)}, 4, {v(vL16)}
            v_and_b32 {v(AD+9)}, 15, {v(AD+8)}
            v_lshlrev_b32 {v(AD+9)}, 8, {v(AD+9)}
            v_bfe_u32 {v(AD+10)}, {v(AD+8)}, 4, 1
            v_lshl_add_u32 {v(AD+9)}, {v(AD+10)}, 14, {v(AD+9)}
            v_lshrrev_b32 {v(AD+10)}, 5, {v(AD+8)}
            v_and_b32 {v(AD+11)}, 7, {v(AD+8)}
            v_xor_b32 {v(AD+10)}, {v(AD+10)}, {v(AD+11)}
            v_lshl_add_u32 {v(AD+9)}, {v(AD+10)}, 4, {v(AD+9)}
            v_add_u32 {v(AD)}, {s(sM0)}, {v(AD+9)}
            v_xor_b32 {v(AD+1)}, 32, {v(AD)}
            v_xor_b32 {v(AD+2)}, 64, {v(AD)}
            v_xor_b32 {v(AD+3)}, 0x60, {v(AD)}
            v_lshrrev_b32 {v(AD+9)}, 3, {v(AD+8)}
            v_lshlrev_b32 {v(AD+10)}, 1, {v(AD+11)}
            v_xor_b32 {v(AD+10)}, {v(AD+10)}, {v(AD+9)}
            v_lshlrev_b32 {v(AD+10)}, 4, {v(AD+10)}
            v_lshl_add_u32 {v(AD+10)}, {v(AD+9)}, 8, {v(AD+10)}
            s_lshl_b32 {s(sE0)}, {s(sM0)}, 2
            v_add_u32 {v(AD+4)}, {s(sE0)}, {v(AD+10)}
            v_xor_b32 {v(AD+5)}, 16, {v(AD+4)}
            v_lshlrev_b32 {v(AD+10)}, 4, {v(AD+11)}
            v_lshl_add_u32 {v(AD+6)}, {v(AD+9)}, 10, {v(AD+10)}
            v_add_u32 {v(AD+7)}, 0x2000, {v(AD+6)}"""))
        self.hold_after_step(epi, n1 + 27)
        for t in range(2):
            for rb in range(2):
                for i in range(16):
                    r = ACC[1] + 32 * t + 16 * rb + i
                    epi.append(Ins(f"v_mul_f32 {v(r)}, {v(r)}, {v(vom+rb)}"))
        self.mark(epi, "bscaled")

    def gen(self):
        cfg = self.cfg
        self.build_steps()
        self.plan_side_streams()
        steps, LA, n1 = self.steps, cfg.LA, self.n1
        if self.typ == "A":
            self.e(srd(SA0, pQKV, 0, 512 * 3072) + srd(SA1, pQKV, -2048, 512 * 3072))
        else:
            self.e(srd(SG, pWG, 0, 512 * 3584) + srd(SU, pWU, -2048, 512 * 3584))
        self.queue_fills()
        k = 0
        while self.mem:
            self.e(self.mem.popleft())
            k += 1
            if k == 4:
                self.e(f"buffer_store_dwordx4 {v(vT+28,4)}, {v(vT+26)}, {s(SWS,4)}, 0 offen sc1")
            if k == 16:
                self.e(f"""buffer_load_dwordx4 {v(vT+12,4)}, {v(vL16)}, {s(SX,4)}, {s(sT0)} offen
                    buffer_load_dwordx4 {v(vT+16,4)}, {v(vL16)}, {s(SX,4)}, {s(sT0)} offen offset:1024
                    global_load_dwordx4 {v(vT+20,4)}, {v(vL16)}, {s(pGW,2)}""")
        self.e(late_setup(self.typ, cfg))
        self.stamp("issued")
        for t in range(LA):
            self.e(self.issue_reads(t))
            if t == 0:
                self.stamp("firstbar")
                self.e(f"v_mov_b32 {v(vPoll)}, 1")
                self.e(f"buffer_store_dword {v(vPoll)}, {v(vT+27)}, {s(SDBG,4)}, 0 offen sc1")
        for t, st in enumerate(steps):
            self.t = t
            if t == 32:
                self.need("g")
            if t == 64:
                self.need("e1")
            if t == n1:
                self.need("e2")
                self.need("a0")
            if st["ph"] == 3 and st["k"] == 0:
                if st["u"] == 4:
                    self.need("a4")
                if st["u"] == 12:
                    self.need("a12")
            mfs = st["mf"](vFR + 8 * (t % 4))
            budget = cfg.budget if st["ph"] in (1, 2) else cfg.budget + 16
            pend = None
            for i, m in enumerate(mfs):
                self.e(m)
                used = 0
                if i == 0 and t + LA < len(steps):
                    pend = self.issue_reads(t + LA)
                if pend:
                    n = -(-len(pend) // (len(mfs) - i)) if len(mfs) - i > 1 and len(pend) > 2 else len(pend)
                    n = max(n, 2)
                    for x in pend[:n]:
                        self.e(x)
                        used += x.cost
                    pend = pend[n:]
                if st.get("frees") is not None and i == 2:
                    self.free_upto = max(self.free_upto, st["frees"] + 1 + NSLOT)
                self.gap(used, budget)
            assert not pend
        self.t = len(steps)
        self.stamp("mainend")
        self.need("bscaled")
        assert not self.mem and not self.epi and not self.ctl, (len(self.mem), len(self.epi), len(self.ctl))
        AD = vT
        for t in range(2):
            for rb in range(2):
                A, B = ACC[0] + 32 * t + 16 * rb, ACC[1] + 32 * t + 16 * rb
                for j in range(4):
                    for i in range(4 * j, 4 * j + 4):
                        self.e(f"v_fmac_f32 {v(B+i)}, {v(A+i)}, {v(vg+rb)}")
                    self.e(f"ds_write_b128 {v(AD+j)}, {v(B+4*j,4)} offset:{t*128+rb*32768}")
        self.barrier()
        R = ACC[0]
        for jj in range(2):
            for w in range(4):
                for e in range(2):
                    self.e(f"ds_read_b128 {v(R+32*jj+8*w+4*e,4)}, {v(AD+4+e)} offset:{jj*2048+w*4096}")
        fl = " sc1" if cfg.out_sc1 else ""
        for jj in range(2):
            b = R + 32 * jj
            for w in range(1, 4):
                for i in range(8):
                    self.e(f"v_add_f32 {v(b+i)}, {v(b+i)}, {v(b+8*w+i)}")
            for k in range(4):
                self.e(f"v_cvt_pk_bf16_f32 {v(b+k)}, {v(b+2*k)}, {v(b+2*k+1)}")
            self.e(f"buffer_store_dwordx4 {v(b,4)}, {v(AD+6+jj)}, {s(SOUT,4)}, {s(sOut)} offen{fl}")
        if cfg.stamps:
            self.stamp("stored")
            self.e("@waitvm all")
            self.stamp("end")
            self.e(f"""s_memrealtime {s(sSt,2)}
                v_writelane_b32 {v(vStamp)}, {s(sSt)}, 31
                s_lshl_b32 {s(sE0)}, s2, 2
                s_add_u32 {s(sE0)}, {s(sE0)}, {s(sW)}
                s_lshl_b32 {s(sE0)}, {s(sE0)}, 7
                s_add_u32 {s(sE0)}, {s(sE0)}, {STAMP_OFF}
                buffer_store_dword {v(vStamp)}, {v(vZst)}, {s(SWS,4)}, {s(sE0)} offen""")
        self.e("s_endpgm")
        return self.out


def decode(dst):
    i, c, rg, idx, ty, rh, ch, prt, rt, ct, fd = [s(dst + k) for k in range(11)]
    return L(f"""s_bfe_u32 {i}, s2, 0x30003
        s_lshr_b32 {c}, s2, 6
        s_and_b32 {rg}, s2, 1
        s_lshl_b32 {rg}, {rg}, 3
        s_add_u32 {rg}, {rg}, {i}
        s_bfe_u32 {idx}, s2, 0x20001
        s_lshl_b32 {idx}, {idx}, 1
        s_and_b32 {ty}, {c}, 1
        s_add_u32 {idx}, {idx}, {ty}
        s_lshr_b32 {ty}, {c}, 1
        s_lshr_b32 {rh}, {s(sW)}, 1
        s_and_b32 {ch}, {s(sW)}, 1
        s_lshl_b32 {prt}, {rg}, 1
        s_add_u32 {prt}, {prt}, {rh}
        s_and_b32 {rt}, s2, 7
        s_lshl_b32 {rt}, {rt}, 2
        s_bfe_u32 {ct}, s2, 0x20003
        s_add_u32 {rt}, {rt}, {ct}
        s_lshr_b32 {ct}, s2, 5
        s_lshl_b32 {fd}, {ty}, 3
        s_add_u32 {fd}, {fd}, {idx}
        s_lshl_b32 {fd}, {fd}, 1
        s_add_u32 {fd}, {fd}, {ch}""")


DEC = 56


def prologue(cfg, code_lines):
    T = vT
    i, c, rg, idx, ty, rh, ch, prt, rt, ct, fd = [s(DEC + k) for k in range(11)]
    p = []
    p += L(f"""s_cmp_ge_u32 s2, 256
        s_cbranch_scc1 L_exit
        s_load_dwordx16 {s(pX,16)}, s[0:1], 0
        s_load_dwordx4 {s(pOUT,4)}, s[0:1], 64
        s_load_dwordx2 {s(pWS,2)}, s[0:1], 80""")
    if cfg.stamps:
        p += L("s_memrealtime s[72:73]\ns_memtime s[74:75]")
    p += L(f"""v_lshrrev_b32 {v(T+30)}, 6, v0
        v_lshlrev_b32 {v(T+26)}, 4, v0
        v_readfirstlane_b32 {s(sW)}, {v(T+30)}
        v_cmp_gt_u32 vcc, 32, v0
        v_and_b32 v0, 63, v0
        v_lshlrev_b32 {v(vL16)}, 4, v0""")
    if cfg.code_pf:
        per = -(-code_lines // 32)
        p += L(f"""s_getpc_b64 s[32:33]
            s_and_b32 s32, s32, 0xffffff00
            s_lshr_b32 {s(sT0)}, s2, 3
            s_mul_i32 {s(sT0)}, {s(sT0)}, {per}
            v_min_u32 {v(T+40)}, {per-1}, v0
            v_add_u32 {v(T+40)}, {s(sT0)}, {v(T+40)}
            v_min_u32 {v(T+40)}, {code_lines-1}, {v(T+40)}
            v_lshlrev_b32 {v(T+40)}, 7, {v(T+40)}
            global_load_dword {v(T+41)}, {v(T+40)}, s[32:33]""")
    p += decode(DEC)
    p += L(f"""s_lshl_b32 {s(sM0)}, {s(sW)}, 12
        s_lshl_b32 {s(sXoff)}, {rg}, 17
        s_lshl_b32 {s(sColA)}, {idx}, 7""")
    if cfg.rot:
        p += L(f"s_lshl_b32 s45, {c}, 1\ns_add_u32 s45, s45, {i}")
    else:
        p += L("s_mov_b32 s45, 0")
    for j in range(8):
        p += L(f"s_add_u32 s46, s45, {j}\ns_and_b32 s46, s46, 7\ns_lshl_b32 {s(sK0+j)}, s46, 6")
    p += L(f"""s_lshr_b32 s46, {idx}, 1
        s_mul_i32 s46, s46, 640
        s_add_u32 {s(sCol3)}, s46, 256
        s_and_b32 s47, {idx}, 1
        s_mul_i32 s48, s47, 384
        s_add_u32 {s(sCol1)}, s46, s48
        s_add_u32 {s(sCol2)}, {s(sCol1)}, 128
        s_add_u32 s46, {s(sColA)}, 2560
        s_cmp_eq_u32 {ty}, 0
        s_cselect_b32 {s(sCol2)}, s46, {s(sCol2)}
        s_lshl_b32 {s(sT0)}, {prt}, 5
        s_add_u32 {s(sT0)}, {s(sT0)}, {fd}
        s_lshl_b32 {s(sT0)}, {s(sT0)}, 11
        s_cmp_eq_u32 s2, 0
        s_cselect_b32 s46, 0, {OOB:#x}""")
    A, B, C, D, E = T + 32, T + 33, T + 34, T + 35, T + 36
    p += L(f"""v_add_u32 {v(T+26)}, s46, {v(T+26)}
        v_mov_b32 {v(T+27)}, {OOB:#x}
        v_lshl_add_u32 {v(A)}, v0, 2, s46
        v_cndmask_b32 {v(T+27)}, {v(T+27)}, {v(A)}, vcc
        v_mov_b32 {v(T+28)}, 0
        v_mov_b32 {v(T+29)}, 0
        v_mov_b32 {v(T+30)}, 0
        v_mov_b32 {v(T+31)}, 0
        v_lshrrev_b32 {v(A)}, 3, v0
        v_lshrrev_b32 {v(B)}, 2, v0
        v_and_b32 {v(B)}, 4, {v(B)}
        v_and_b32 {v(C)}, 7, v0
        v_xor_b32 {v(B)}, {v(B)}, {v(C)}
        v_lshlrev_b32 {v(B)}, 4, {v(B)}
        v_lshl_add_u32 {v(vP0)}, {v(A)}, 10, {v(B)}
        v_add_u32 {v(vP1)}, {8*1024-1024}, {v(vP0)}
        s_lshl_b32 s46, {s(sW)}, 4
        v_add_u32 {v(D)}, s46, {v(A)}
        v_mul_u32_u24 {v(E)}, 3072, {v(D)}
        v_add_u32 {v(vD0)}, {v(E)}, {v(B)}
        v_add_u32 {v(vD1)}, {8*3072-1024}, {v(vD0)}
        v_mul_u32_u24 {v(E)}, 3584, {v(D)}
        v_add_u32 {v(vG0)}, {v(E)}, {v(B)}
        v_add_u32 {v(vG1)}, {8*3584-1024}, {v(vG0)}
        v_lshrrev_b32 {v(B)}, 4, v0
        v_xor_b32 {v(B)}, {v(B)}, {v(C)}
        v_lshlrev_b32 {v(B)}, 4, {v(B)}
        s_lshl_b32 s46, {s(sW)}, 5
        v_add_u32 {v(D)}, s46, {v(A)}
        v_lshl_add_u32 {v(T)}, {v(D)}, 10, {v(B)}
        v_xor_b32 {v(T+1)}, 64, {v(T)}
        v_add_u32 {v(T+1)}, {8*1024-1024}, {v(T+1)}""")
    p += L("@waitlgkm")
    p += srd(SX, pX, 0, 2048 * 1024) + srd(SX2, pX, 16 * 1024 - 2048, 2048 * 1024) + srd(SWS, pWS, 0, WS_BYTES)
    if cfg.stamps:
        p += L(f"""v_mov_b32 {v(vStamp)}, 0
            v_writelane_b32 {v(vStamp)}, s72, 0
            v_writelane_b32 {v(vStamp)}, s74, 30""")
    p += L(f"s_cmp_lg_u32 {ty}, 0\ns_cbranch_scc1 L_typeB")
    return p


def late_setup(typ, cfg):
    T = vT
    i, c, rg, idx, ty, rh, ch, prt, rt, ct, fd = [s(DEC + k) for k in range(11)]
    p = []
    t0, t1, t2 = s(sT0), s(sT1), s(sT2)
    p += L(f"""s_mul_i32 {t0}, {prt}, {144*2048}
        s_add_u32 {t0}, {t0}, {A_OFF}
        s_lshl_b32 {t1}, {ch}, 12
        s_add_u32 {t0}, {t0}, {t1}
        s_lshl_b32 {t1}, {ch}, 10
        s_add_u32 {s(sSt0)}, {t0}, {t1}
        s_xor_b32 {t1}, {t1}, 1024
        s_add_u32 {s(sSt1)}, {t0}, {t1}
        s_lshl_b32 {s(sFlag)}, {prt}, 7
        s_lshl_b32 {t0}, {fd}, 2
        s_add_u32 {s(sFlag)}, {s(sFlag)}, {t0}
        s_lshl_b32 {s(sPoll)}, {rt}, 7
        s_mul_i32 {s(sA2)}, {rt}, {144*2048}
        s_add_u32 {s(sA2)}, {s(sA2)}, {A_OFF}
        s_mov_b32 {s(sMask)}, 0xffff
        s_mov_b32 {s(sMask+1)}, 0xffff""")
    A, B, C, D, E = T + 32, T + 33, T + 34, T + 35, T + 36
    p += L(f"""v_bfe_u32 {v(B)}, v0, 2, 2
        v_lshlrev_b32 {v(A)}, 7, {v(B)}
        v_and_b32 {v(B)}, 2, {v(B)}
        v_bfe_u32 {v(C)}, v0, 4, 1
        v_lshl_add_u32 {v(A)}, {v(C)}, 5, {v(A)}
        v_and_b32 {v(C)}, 3, v0
        v_lshl_add_u32 {v(A)}, {v(C)}, 3, {v(A)}
        v_lshrrev_b32 {v(D)}, 5, v0
        v_lshl_add_u32 {v(A)}, {v(B)}, 5, {v(A)}
        v_lshl_add_u32 {v(E)}, {v(D)}, 10, {v(A)}
        s_lshl_b32 {t0}, {ch}, 6
        v_xor_b32 {v(vW)}, {t0}, {v(E)}
        v_add_u32 {v(vW+1)}, 0x10000, {v(vW)}
        v_add_u32 {v(vW+2)}, 0x20000, {v(vW)}""")
    if typ == "B":
        p += L(f"""s_and_b32 {t0}, {idx}, 1
            s_lshl_b32 {t0}, {t0}, 6
            v_xor_b32 {v(vWh)}, {t0}, {v(E)}
            v_add_u32 {v(vWh+1)}, 0x10000, {v(vWh)}
            v_add_u32 {v(vWh+2)}, 0x20000, {v(vWh)}""")
    p += L(f"""v_lshl_add_u32 {v(E)}, {v(D)}, 9, {v(A)}
        v_add_u32 {v(vQ)}, {s(sM0)}, {v(E)}
        v_add_u32 {v(vQ+1)}, 0x10000, {v(vQ)}
        v_add_u32 {v(vQ+2)}, 0x20000, {v(vQ)}
        v_xor_b32 {v(vQ+3)}, 64, {v(vQ)}
        v_xor_b32 {v(vQ+4)}, 64, {v(vQ+1)}
        v_xor_b32 {v(vQ+5)}, 64, {v(vQ+2)}""")
    p += L(f"""v_and_b32 {v(A)}, 31, v0
        v_lshlrev_b32 {v(vPollA)}, 2, {v(A)}
        s_lshl_b32 {t0}, {s(sW)}, 5
        v_add_u32 {v(B)}, {t0}, {v(A)}
        v_bfe_u32 {v(C)}, v0, 1, 3
        v_xor_b32 {v(C)}, {v(C)}, {v(D)}
        v_lshlrev_b32 {v(C)}, 4, {v(C)}
        v_lshl_add_u32 {v(T+2)}, {v(B)}, 7, {v(C)}""")
    for k in range(1, 8):
        p += L(f"v_xor_b32 {v(T+2+k)}, {(k>>1)*32 + (k&1)*4096}, {v(T+2)}")
    p += L(f"""v_mov_b32 {v(vK1)}, {f2u(K1):#x}
        v_mov_b32 {v(E)}, {OOB:#x}
        v_cmp_eq_u32 vcc, 0, v0
        v_mov_b32 {v(B)}, 0
        v_lshlrev_b32 {v(C)}, 2, {v(D)}
        v_cndmask_b32 {v(vFlag)}, {v(E)}, {v(B)}, vcc
        v_cmp_eq_u32 vcc, 0, {v(A)}
        v_and_b32 {v(B)}, 15, v0
        v_lshlrev_b32 {v(B)}, 8, {v(B)}
        v_cndmask_b32 {v(vGst)}, {v(E)}, {v(C)}, vcc
        v_cmp_eq_u32 vcc, 0, {v(D)}
        s_lshl_b32 {t0}, {rh}, 7
        s_lshl_b32 {t1}, {fd}, 2
        s_add_u32 {t0}, {t0}, {t1}
        v_cndmask_b32 {v(vZst)}, {v(E)}, {v(vPollA)}, vcc
        v_add_u32 {v(vKvp)}, {t0}, {v(B)}""")
    if typ == "A":
        p += srd(SG, pWG, 0, 512 * 3584) + srd(SU, pWU, -2048, 512 * 3584)
    p += srd(SOUT, pOUT, 0, 2048 * 1024) + srd(SDBG, pDBG, 0, 256)
    p += srd(SO2, pWO, 16 * 1024 - 2048, 512 * 1024)
    p += L(f"""s_lshl_b32 {t0}, {idx}, 2
        s_lshl_b32 {t1}, {ch}, 1
        s_add_u32 {t0}, {t0}, {t1}
        s_add_u32 {t0}, {t0}, {rh}
        s_lshl_b32 {t0}, {t0}, 4
        s_add_u32 {t0}, {t0}, {rg}
        s_lshl_b32 {s(sZ)}, {t0}, 7
        s_add_u32 {s(sZ)}, {s(sZ)}, {Z_OFF}
        s_lshl_b32 {s(sSpin)}, {t0}, 10
        s_lshl_b32 {s(sGst)}, {prt}, 5
        s_add_u32 {s(sGst)}, {s(sGst)}, {fd}
        s_lshl_b32 {s(sGst)}, {s(sGst)}, 3
        s_add_u32 {s(sGst)}, {s(sGst)}, {G_OFF}
        s_lshl_b32 {t0}, {rt}, 2
        s_add_u32 {t0}, {t0}, {s(sW)}
        s_lshl_b32 {t0}, {t0}, 14
        s_lshl_b32 {s(sT3)}, {ct}, 7
        s_add_u32 {s(sOut)}, {t0}, {s(sT3)}
        s_and_b32 {t0}, {idx}, 1
        s_sub_u32 {t0}, {t0}, {ch}
        s_lshl_b32 {s(sT4)}, {t0}, 12""")
    if cfg.rot:
        p += L(f"s_add_u32 {t0}, {rt}, {ct}")
    else:
        p += L(f"s_mov_b32 {t0}, 0")
    for k in range(4):
        p += L(f"""s_add_u32 {t1}, {t0}, {k}
            s_and_b32 {t1}, {t1}, 3
            s_lshl_b32 {t2}, {s(sW)}, 2
            s_add_u32 {t2}, {t2}, {t1}
            s_lshl_b32 {s(sRotB+k)}, {t2}, 5
            s_lshr_b32 {t2}, {t1}, 1
            s_add_u32 {t2}, {t2}, {t2}
            s_add_u32 {t2}, {t2}, {t2}
            s_add_u32 {t1}, {t1}, {t2}
            s_mul_i32 {t2}, {s(sW)}, 10
            s_add_u32 {t1}, {t1}, {t2}
            s_lshl_b32 {s(sRotA+k)}, {t1}, 5""")
    p += srd(SD, pWD, 0, 1792 * 1024) + srd(SD2, pWD, 16 * 1024 - 2048, 1792 * 1024) + srd(SO, pWO, 0, 512 * 1024)
    p += L(f"""s_mov_b32 {s(sW2)}, {s(sT3)}
        s_add_u32 {s(sKV)}, {s(sSpin)}, {KV_OFF}""")
    return p


def srd(d, base, delta, nbytes):
    r = []
    if delta > 0:
        r += L(f"s_add_u32 {s(d)}, {s(base)}, {delta}\ns_addc_u32 {s(d+1)}, {s(base+1)}, 0")
    elif delta < 0:
        r += L(f"s_sub_u32 {s(d)}, {s(base)}, {-delta}\ns_subb_u32 {s(d+1)}, {s(base+1)}, 0")
    else:
        r += L(f"s_mov_b32 {s(d)}, {s(base)}\ns_mov_b32 {s(d+1)}, {s(base+1)}")
    r += L(f"s_mov_b32 {s(d+2)}, {nbytes - delta}\ns_mov_b32 {s(d+3)}, 0x20000")
    return r


HEADER = """; Fused gated mix of a linear-attention block and a GeGLU FFN, one persistent launch (generated by gen/kernel.py).
; Kernarg layout (88 bytes): A_x, A_wqkv, A_wo, B_x, B_w_gate, B_w_up, B_w_down, gate_w, d_out, d_debug, d_ws
; @launch grid=(256,1,1) block=(256,1,1) lds=%d
.amdgcn_target "amdgcn-amd-amdhsa--gfx950"
""" % LDS_BYTES


def build(cfg, code_lines=340, verbose=True):
    pro = prologue(cfg, code_lines)
    txt = []
    names = {}
    for typ in "AB":
        b = Body(typ, cfg)
        body = b.gen()
        lines = finalize(pro + body, verbose=verbose)
        if typ == "B":
            k = max(n for n, l in enumerate(lines) if "L_typeB" in l)
            lines = ["L_typeB:"] + lines[k + 1:]
        txt += lines + b.retry
        names[typ] = b.stamp_names
    txt.append("L_exit:\n    s_endpgm")
    lab = NAME + "_kernel"
    return ("; diagnostic build with stamps\n" if cfg.stamps else "") + HEADER + kernel_head(lab) + "\n".join(txt) + "\n" + kernel_desc(lab, 512, 256), names


if __name__ == "__main__":
    import json
    out = sys.argv[1]
    kw = {}
    for a in sys.argv[2:]:
        k, x = a.split("=")
        kw[k] = eval(x)
    import subprocess, re, os
    t, names = build(Cfg(**kw), 64, verbose=False)
    open(out, "w").write(t)
    subprocess.check_call(["clang", "-x", "assembler", "-target", "amdgcn-amd-amdhsa", "-mcpu=gfx950", "-c", out, "-o", "kk.o"])
    h = subprocess.check_output(["llvm-objdump", "-h", "kk.o"], text=True)
    size = int(re.search(r"\.text\s+([0-9a-f]+)", h).group(1), 16)
    print("code bytes", size)
    t, names = build(Cfg(**kw), (size - 64) // 128)
    open(out, "w").write(t)
    json.dump(names, open(out + ".names", "w"))
```

```python
import struct
import sys
from collections import deque

sys.path.insert(0, "gen")
from asmlib import NAME, WS_BYTES, STAMP_OFF, kernel_head, kernel_desc
from sched import Ins, Hold, Group, Call, L, finalize


def f2u(x):
    return struct.unpack("<I", struct.pack("<f", x))[0]


LOG2E = 1.4426950408889634
K0 = -2.0 * 0.7978845608028654 * LOG2E
K1 = K0 * 0.044715
EPS = 1e-6

FLAG_OFF = 640 * 1024
G_OFF = 768 * 1024
Z_OFF = 16384
KV_OFF = 131072
A_OFF = 1 << 20
OOB = 0x7FFF0000

NSLOT = 9
SLOT = 16384
SCR = NSLOT * SLOT
LDS_BYTES = 163840

sT0, sW, sM0, sXoff, sColA, sCol1, sCol2, sCol3 = 3, 4, 5, 6, 7, 8, 9, 10
sSt0, sSt1, sFlag, sPoll, sA2 = 11, 12, 13, 14, 15
sK0 = 16
sMask = 24
sT1, sT2 = 26, 27
SX, SX2, SA0, SA1, SG, SU, SWS, SD, SD2, SO, SO2, SOUT, SDBG = 28, 32, 36, 40, 44, 48, 52, 56, 60, 64, 68, 72, 76
pOUT, pDBG, pX, pQKV, pWO, pBX, pWG, pWU, pWD, pGW, pWS = 80, 82, 84, 86, 88, 90, 92, 94, 96, 98, 100
sRotA, sRotB = 80, 84
sW2, sKV, sZ, sGst, sOut, sT3, sT4, sSpin, sE0, sE1 = 88, 89, 90, 91, 92, 93, 94, 95, 96, 97
sSt = 100

vL16, vD0, vD1, vG0, vG1, vP0, vP1 = 1, 2, 3, 4, 5, 6, 7
vW, vWh, vQ = 8, 11, 14
vK1, vPollF, vGld, vPoll, vKvp, vZst, vGst = 20, 21, 22, 23, 24, 25, 26
vg, vom, vStamp = 27, 29, 31
vFR = 32
vT = 64
ACC = (128, 192)


def v(a, n=1):
    return f"v{a}" if n == 1 else f"v[{a}:{a+n-1}]"


def a_(a, n=1):
    return f"a{a}" if n == 1 else f"a[{a}:{a+n-1}]"


def s(a, n=1):
    return f"s{a}" if n == 1 else f"s[{a}:{a+n-1}]"


MF = "v_mfma_f32_32x32x16_bf16"


class Cfg:
    stamps = False
    LA = 2
    budget = 24
    sig1, sig2, sig3 = 8, 6, 2
    kvp0, kvp1 = 4, 4
    p10, p11, p20, p21, p30, p31 = 4, 4, 1, 2, 2, 3
    gld, init0, init1 = 12, 30, 8
    vmgap = (2, 2, 1, 1)
    init_fills = 4
    x_nodma = False
    x_nobar = False
    x_noread = False
    x_nomfma = False
    x_nopoll = False
    dbgwg = None
    dbgskip = 3
    out_sc1 = False
    code_pf = True
    rot = True
    spin_max = 400000

    def __init__(self, **kw):
        for k, x in kw.items():
            assert hasattr(Cfg, k), k
            setattr(self, k, x)


class Body:
    def __init__(self, typ, cfg):
        self.typ, self.cfg = typ, cfg
        self.out = []
        self.retry = []
        self.mem = deque()
        self.epi = deque()
        self.ctl = deque()
        self.owner = {}
        self.nbar = 0
        self.t = -1
        self.stamp_names = []
        self.marks = set()
        self.nfill1 = 28 if typ == "A" else 32
        self.nfill = self.nfill1 + 18
        self.next_fill = 0
        self.free_upto = NSLOT
        self.xwin = 0
        self.nmf = 0
        self.last_vm = -100
        self.vm_gap = 2

    def e(self, x, tag=None):
        if isinstance(x, str):
            self.out += L(x, tag)
        elif isinstance(x, Group):
            self.out += x.items
        elif isinstance(x, list):
            for y in x:
                self.e(y)
        else:
            self.out.append(x)

    def stamp_ins(self, name):
        if not self.cfg.stamps:
            return []
        self.stamp_names.append(name)
        k = len(self.stamp_names)
        assert k < 31
        return [Group(L(f"s_memtime {s(sSt,2)}\nv_writelane_b32 {v(vStamp)}, {s(sSt)}, {k}"))]

    def stamp(self, name):
        self.e(self.stamp_ins(name))

    @staticmethod
    def is_vm(it):
        xs = it.items if isinstance(it, Group) else [it]
        return any(x.kind in ("vm_ld", "vm_st", "dma") for x in xs)

    def pull(self, q, budget):
        used = 0
        while q:
            it = q[0]
            if not isinstance(it, (Hold, Call)) and self.is_vm(it):
                if self.nmf - self.last_vm < self.vm_gap:
                    break
                self.last_vm = self.nmf
                q.popleft()
                self.e(it)
                used += it.cost
                continue
            if isinstance(it, Hold):
                if not it.cond():
                    break
                q.popleft()
                continue
            if isinstance(it, Call):
                q.popleft()
                it.fn()
                continue
            if used + it.cost > budget and not (used == 0 and budget >= 4):
                break
            q.popleft()
            self.e(it)
            used += it.cost
        return used

    def flush(self, q, mark):
        while mark not in self.marks:
            it = q.popleft()
            if isinstance(it, Hold):
                if it.name.startswith("mark ") and not it.cond():
                    self.need(it.name[5:])
                assert it.name == "time" or it.cond(), ("flush across hold", it.name, mark)
                continue
            if isinstance(it, Call):
                it.fn()
                continue
            self.e(it)

    def need(self, mark):
        self.flush(self.owner[mark], mark)

    def mark(self, q, name):
        self.owner[name] = q
        q.append(Call(lambda: self.marks.add(name)))

    def hold_steps(self, q, n):
        st = {}
        q.append(Call(lambda: st.__setitem__("t", self.t)))
        q.append(Hold(lambda: self.t >= st["t"] + n, "time"))

    def hold_bar(self, q):
        st = {}
        q.append(Call(lambda: st.__setitem__("b", self.nbar)))
        q.append(Hold(lambda: self.nbar > st["b"], "bar"))

    def hold_after_step(self, q, t):
        q.append(Hold(lambda: self.t > t, "step"))

    def hold_mark(self, q, m):
        q.append(Hold(lambda: m in self.marks, "mark " + m))

    def gap(self, used, budget=None):
        b = (budget or self.cfg.budget) - used
        self.queue_fills()
        if self.epi and not isinstance(self.epi[0], (Hold, Call)) and self.is_vm(self.epi[0]):
            b -= self.pull(self.epi, 4)
        b -= self.pull(self.ctl, max(b, 0))
        b -= self.pull(self.mem, max(b, 0))
        if b > 0:
            self.pull(self.epi, b)

    def fill_ins(self, n):
        slot = (n % NSLOT) * SLOT
        tag = f"F{n}"
        pre = []
        if n < 16 and n % 2 == 0:
            j = n // 2
            pre = L(f"s_lshl_b32 {s(sT1)}, {s(sK0+j)}, 1\ns_add_u32 {s(sT1)}, {s(sT1)}, {s(sXoff)}")
            ops = [(vT, SX, sT1), (vT + 1, SX, sT1), (vT, SX2, sT1), (vT + 1, SX2, sT1)]
        elif n < self.nfill1:
            if n < 16:
                p, j = 0, n // 2
            else:
                p, j = 1 + (n - 16) // 8, (n - 16) % 8
            if self.typ == "A" and p == 0:
                pre = L(f"""s_mul_i32 {s(sT1)}, {s(sK0+j)}, 3072
                    s_add_u32 {s(sT1)}, {s(sT1)}, {s(sColA)}
                    s_add_u32 {s(sT2)}, {s(sT1)}, 2048
                    s_add_u32 {s(sT1)}, {s(sT1)}, 1024""")
                ops = [(vD0, SA0, sT1), (vD1, SA0, sT1), (vD0, SA1, sT2), (vD1, SA1, sT2)]
            elif self.typ == "A" and p == 2:
                pre = L(f"""s_mul_i32 {s(sT1)}, {s(sK0+2*j)}, 3072
                    s_mul_i32 {s(sT2)}, {s(sK0+2*j+1)}, 3072
                    s_add_u32 {s(sT1)}, {s(sT1)}, {s(sColA)}
                    s_add_u32 {s(sT2)}, {s(sT2)}, {s(sColA)}""")
                ops = [(vD0, SA0, sT1), (vD1, SA0, sT1), (vD0, SA1, sT2), (vD1, SA1, sT2)]
            else:
                col = (sCol1, sCol2, sCol3)[p]
                pre = L(f"s_mul_i32 {s(sT1)}, {s(sK0+j)}, 3584\ns_add_u32 {s(sT1)}, {s(sT1)}, {s(col)}")
                ops = [(vG0, SG, sT1), (vG1, SG, sT1), (vG0, SU, sT1), (vG1, SU, sT1)]
        else:
            u = n - self.nfill1
            pre = self.unit_f(u, sT1) + L(f"s_lshl_b32 {s(sT1)}, {s(sT1)}, 10\ns_add_u32 {s(sT1)}, {s(sT1)}, {s(sW2)}")
            d0, d1 = (SD, SD2) if u < 14 else (SO, SO2)
            ops = [(vP0, d0, sT1), (vP1, d0, sT1), (vP0, d1, sT1), (vP1, d1, sT1)]
        pre += L(f"s_add_u32 m0, {s(sM0)}, {slot}")
        items = []
        for i, (vo, srd, so) in enumerate(ops):
            off = f" offset:{1024*i}" if i else ""
            items.append(Ins(f"buffer_load_dwordx4 {v(vo)}, {s(srd,4)}, {s(so)} offen{off} lds", tag=tag))
        return [Group(pre + items[:1])] + [Group([x]) for x in items[1:]]

    def unit_f(self, u, dst):
        if u < 4:
            return L(f"s_mov_b32 {s(dst)}, {s(sRotA+u)}")
        if u < 8:
            return L(f"s_add_u32 {s(dst)}, {s(sRotA+u-4)}, 64")
        if u < 12:
            return L(f"s_add_u32 {s(dst)}, {s(sRotB+u-8)}, 1280")
        if u < 14:
            return L(f"s_mul_i32 {s(dst)}, {s(sW)}, 320\ns_add_u32 {s(dst)}, {s(dst)}, {128+32*(u-12)}")
        return L(f"s_mov_b32 {s(dst)}, {s(sRotB+u-14)}")

    def queue_fills(self):
        while self.next_fill < min(self.free_upto, self.nfill):
            for g in self.fill_ins(self.next_fill):
                self.mem.append(g)
            self.next_fill += 1

    def areg(self, u):
        u %= 16
        if self.typ == "B":
            return 128 + 16 * u if u < 8 else 16 * (u - 8)
        j, p = u >> 2, u & 3
        return (p >> 1) * 128 + 32 * j + (p & 1) * 16

    def aload_ins(self, u):
        pre = self.unit_f(u, sT3)
        if u >= 14:
            pre += L(f"s_add_u32 {s(sT3)}, {s(sT3)}, 1792")
        pre += L(f"s_lshl_b32 {s(sT3)}, {s(sT3)}, 7\ns_add_u32 {s(sT3)}, {s(sT3)}, {s(sA2)}")
        items = []
        for i in range(4):
            off = f" offset:{1024*i}" if i else ""
            items.append(Ins(f"buffer_load_dwordx4 {a_(self.areg(u)+4*i,4)}, {v(vL16)}, {s(SWS,4)}, {s(sT3)} offen{off} sc1"))
        return [Group(pre + items[:1])] + [Group([x]) for x in items[1:]]

    def poll_load(self, voff, soff, srd=SWS):
        return Ins(f"buffer_load_dword {v(vPoll)}, {v(voff)}, {s(srd,4)}, {soff} offen sc1")

    def poll_check(self, voff, soff, want, srd=SWS):
        k = len(self.retry)
        lab = f"L{self.typ}_poll{k}"
        self.retry.append(f"""{lab}_retry:
    s_mov_b32 {s(sSpin)}, 0
{lab}_loop:
    s_sleep 4
    buffer_load_dword {v(vPoll)}, {v(voff)}, {s(srd,4)}, {soff} offen sc1
    s_add_u32 {s(sSpin)}, {s(sSpin)}, 1
    s_cmp_ge_u32 {s(sSpin)}, {self.cfg.spin_max}
    s_waitcnt vmcnt(0)
    s_cbranch_scc1 {lab}_ok
    v_cmp_gt_u32 vcc, {want}, {v(vPoll)}
    s_nop 1
    s_cbranch_vccnz {lab}_loop
    s_branch {lab}_ok""")
        return Group(L(f"v_cmp_gt_u32 vcc, {want}, {v(vPoll)}\ns_cbranch_vccnz {lab}_retry\n{lab}_ok:"))

    def signal(self, q, stage, tag, delay):
        self.hold_mark(q, f"e{stage}")
        self.hold_steps(q, delay)
        q.append(Group(L(f"v_mov_b32 {v(vPoll)}, {stage}\n@waitvm {tag}") +
                       L(f"buffer_store_dword {v(vPoll)}, {v(vZst)}, {s(SWS,4)}, {s(sFlag)} offen sc1")))
        q.extend(self.stamp_ins(f"sig{stage}"))
        self.mark(q, f"sig{stage}")

    def gelu_block(self, G, U, soff, tag, T):
        r = []
        for b in range(4):
            idx = range(4 * b, 4 * b + 4)
            t = lambda i: T + (i & 7)
            r += [Ins(f"v_mul_f32 {v(t(i))}, {v(G+i)}, {v(G+i)}") for i in idx]
            r += [Ins(f"v_fmaak_f32 {v(t(i))}, {v(vK1)}, {v(t(i))}, {f2u(K0):#x}") for i in idx]
            r += [Ins(f"v_mul_f32 {v(t(i))}, {v(t(i))}, {v(G+i)}") for i in idx]
            r += [Ins(f"v_exp_f32 {v(t(i))}, {v(t(i))}") for i in idx]
            r += [Ins(f"v_mul_f32 {v(U+i)}, {v(G+i)}, {v(U+i)}") for i in idx]
            r += [Ins(f"v_add_f32 {v(t(i))}, 1.0, {v(t(i))}") for i in idx]
            r += [Ins(f"v_rcp_f32 {v(t(i))}, {v(t(i))}") for i in idx]
            r += [Ins(f"v_mul_f32 {v(U+i)}, {v(U+i)}, {v(t(i))}") for i in idx]
            r += [Ins(f"v_cvt_pk_bf16_f32 {v(G+2*b+k)}, {v(U+4*b+2*k)}, {v(U+4*b+2*k+1)}") for k in range(2)]
            if b & 1:
                hf = b >> 1
                off = " offset:2048" if hf else ""
                r.append(Ins(f"buffer_store_dwordx4 {v(G+4*hf,4)}, {v(vL16)}, {s(SWS,4)}, {s(soff)} offen{off} sc1", tag=tag))
        return r

    def phi_block(self, X, T):
        r = []
        for b in range(4):
            idx = range(4 * b, 4 * b + 4)
            t = lambda i: T + (i & 7)
            r += [Ins(f"v_mul_f32 {v(t(i))}, {f2u(LOG2E):#x}, {v(X+i)}") for i in idx]
            r += [Ins(f"v_exp_f32 {v(t(i))}, {v(t(i))} clamp") for i in idx]
            r += [Ins(f"v_max_f32 {v(X+i)}, {f2u(EPS):#x}, {v(X+i)}") for i in idx]
            r += [Ins(f"v_add_f32 {v(X+i)}, {v(X+i)}, {v(t(i))}") for i in idx]
            r += [Ins(f"v_cvt_pk_bf16_f32 {v(X+2*b+k)}, {v(X+4*b+2*k)}, {v(X+4*b+2*k+1)}") for k in range(2)]
        return r

    def gu_epilogue(self, q, acc, col, tag, half=False):
        T = vT + 56
        q.append(Group(L(f"""s_lshl_b32 {s(sE1)}, {s(col)}, 6
            s_add_u32 {s(sE0)}, {s(sE1)}, {s(sSt0)}
            s_add_u32 {s(sE1)}, {s(sE1)}, {s(sSt1)}""")))
        if half:
            q.append(Ins(f"s_add_u32 {s(sE0)}, {s(sE0)}, {s(sT4)}"))
            q.extend(self.gelu_block(acc, acc + 32, sE0, tag, T))
        else:
            q.extend(self.gelu_block(acc, acc + 32, sE0, tag, T))
            q.extend(self.gelu_block(acc + 16, acc + 48, sE1, tag, T))

    def g_compute(self, q):
        X0, X1, GW, R0, R1 = vT + 12, vT + 16, vT + 20, vT + 24, vT + 25
        r = []
        r += L(f"v_mov_b32 {v(R0)}, 0\nv_mov_b32 {v(R1)}, 0")
        for i in range(4):
            r += L(f"v_dot2c_f32_bf16 {v(R0)}, {v(X0+i)}, {v(GW+i)}\nv_dot2c_f32_bf16 {v(R1)}, {v(X1+i)}, {v(GW+i)}")
        r += L(f"""v_permlane32_swap_b32 {v(R0)}, {v(R1)}
            v_add_f32 {v(R0)}, {v(R0)}, {v(R1)}
            v_add_f32_dpp {v(R0)}, {v(R0)}, {v(R0)} quad_perm:[1,0,3,2] row_mask:0xf bank_mask:0xf
            v_add_f32_dpp {v(R0)}, {v(R0)}, {v(R0)} quad_perm:[2,3,0,1] row_mask:0xf bank_mask:0xf
            v_add_f32_dpp {v(R0)}, {v(R0)}, {v(R0)} row_half_mirror row_mask:0xf bank_mask:0xf
            v_add_f32_dpp {v(R0)}, {v(R0)}, {v(R0)} row_mirror row_mask:0xf bank_mask:0xf
            v_mov_b32 {v(R1)}, {v(R0)}
            v_permlane16_swap_b32 {v(R0)}, {v(R1)}
            v_add_f32 {v(R0)}, {v(R0)}, {v(R1)}
            v_mul_f32 {v(R0)}, {f2u(-LOG2E):#x}, {v(R0)}
            v_exp_f32 {v(R0)}, {v(R0)}
            v_add_f32 {v(R0)}, 1.0, {v(R0)}
            v_rcp_f32 {v(R0)}, {v(R0)}""")
        r += L(f"buffer_store_dword {v(R0)}, {v(vGst)}, {s(SWS,4)}, {s(sGst)} offen sc1", tag="st1")
        q.extend(r)

    def kv_epilogue(self, q):
        acc = ACC[0]
        D2, DZ, ONE, T, AD = vT, vT + 16, vT + 32, vT + 56, vT + 36
        for i in range(4):
            q.append(Ins(f"v_mov_b32 {v(ONE+i)}, 0x3f803f80"))
        first = True
        for j in range(2):
            K, V = acc + 16 * j, acc + 32 + 16 * j
            q.extend([Ins(f"v_cvt_pk_bf16_f32 {v(V+k)}, {v(V+2*k)}, {v(V+2*k+1)}") for k in range(8)])
            q.extend(self.phi_block(K, T))
            for hf in range(2):
                c2, cz = ("0", "0") if first else (v(D2, 16), v(DZ, 16))
                first = False
                q.append(Ins(f"{MF} {v(D2,16)}, {v(K+4*hf,4)}, {v(V+4*hf,4)}, {c2}", cost=32))
                q.append(Ins(f"{MF} {v(DZ,16)}, {v(ONE,4)}, {v(K+4*hf,4)}, {cz}", cost=32))
        q.extend(L(f"""s_lshl_b32 {s(sE0)}, {s(sW)}, 11
            s_add_u32 {s(sE0)}, {s(sE0)}, {SCR}
            v_add_u32 {v(AD)}, {s(sE0)}, {v(vL16)}
            s_and_b32 {s(sE0)}, {s(sW)}, 1
            s_lshl_b32 {s(sE0)}, {s(sE0)}, 11
            s_lshr_b32 {s(sE1)}, {s(sW)}, 1
            s_lshl_b32 {s(sE1)}, {s(sE1)}, 10
            s_add_u32 {s(sE0)}, {s(sE0)}, {s(sE1)}
            s_add_u32 {s(sE0)}, {s(sE0)}, {SCR}
            v_add_u32 {v(AD+1)}, {s(sE0)}, {v(vL16)}"""))
        for i in range(8):
            q.append(Ins(f"v_cndmask_b32 {v(D2+i)}, {v(D2+8+i)}, {v(D2+i)}, {s(sMask,2)}"))
        q.extend(L(f"""ds_write_b128 {v(AD)}, {v(D2,4)}
            ds_write_b128 {v(AD)}, {v(D2+4,4)} offset:1024"""))
        q.extend(L(f"buffer_store_dword {v(DZ)}, {v(vZst)}, {s(SWS,4)}, {s(sZ)} offen sc1", tag="st1"))
        self.hold_bar(q)
        q.extend(L(f"""ds_read_b128 {v(D2,4)}, {v(AD+1)}
            ds_read_b128 {v(D2+4,4)}, {v(AD+1)} offset:4096"""))
        self.hold_steps(q, 1)
        for i in range(4):
            q.append(Ins(f"v_add_f32 {v(D2+i)}, {v(D2+i)}, {v(D2+4+i)}"))
        q.extend(L(f"buffer_store_dwordx4 {v(D2,4)}, {v(vL16)}, {s(SWS,4)}, {s(sKV)} offen sc1", tag="st1"))

    def kv_gather_plan(self):
        self.kvdst = [vT + 4 * i for i in range(8)] + [ACC[0] + 32 + 4 * i for i in range(8)]

    def kv_gather_loads(self, q):
        dst = self.kvdst
        q.append(Group(L(f"s_and_b32 {s(sT3)}, {s(sKV)}, {(~16383) & 0xffffffff:#x}")))
        for i in range(16):
            if i and i % 4 == 0:
                q.append(Ins(f"s_add_u32 {s(sT3)}, {s(sT3)}, 4096"))
            off = f" offset:{1024*(i%4)}" if i % 4 else ""
            q.append(Ins(f"buffer_load_dwordx4 {v(dst[i],4)}, {v(vL16)}, {s(SWS,4)}, {s(sT3)} offen{off} sc1"))
        Z = vT + 32
        q.extend(L(f"""s_and_b32 {s(sT3)}, {s(sZ)}, {(~2047) & 0xffffffff:#x}
            v_lshrrev_b32 {v(Z+8)}, 2, {v(vL16)}"""))
        for i in range(8):
            off = f" offset:{256*i}" if i else ""
            q.append(Ins(f"buffer_load_dword {v(Z+i)}, {v(Z+8)}, {s(SWS,4)}, {s(sT3)} offen{off} sc1"))

    def kv_gather_sum(self, q):
        dst, Z = self.kvdst, vT + 32
        AD = vT + 44
        S2 = SCR + 8192
        q.extend(L(f"""s_and_b32 {s(sE0)}, {s(sW)}, 1
            s_lshl_b32 {s(sE0)}, {s(sE0)}, 11
            s_add_u32 {s(sE0)}, {s(sE0)}, {S2}
            v_add_u32 {v(AD+1)}, {s(sE0)}, {v(vL16)}
            s_lshr_b32 {s(sE1)}, {s(sW)}, 1
            s_lshl_b32 {s(sE1)}, {s(sE1)}, 3
            v_add_u32 {v(AD)}, {s(sE1)}, {v(AD+1)}
            s_lshl_b32 {s(sE1)}, {s(sE1)}, 5
            s_add_u32 {s(sE1)}, {s(sE1)}, {s(sE0)}
            s_add_u32 {s(sE1)}, {s(sE1)}, 1024
            v_lshrrev_b32 {v(AD+2)}, 2, {v(vL16)}
            v_add_u32 {v(AD+2)}, {s(sE1)}, {v(AD+2)}"""))
        q.extend(L(f"""v_lshrrev_b32 {v(AD+3)}, 2, {v(vL16)}
            v_and_b32 {v(AD+3)}, 64, {v(AD+3)}
            v_xor_b32 {v(AD+3)}, 64, {v(AD+3)}
            v_lshrrev_b32 {v(AD+4)}, 5, {v(vL16)}
            v_and_b32 {v(AD+4)}, 16, {v(AD+4)}
            s_add_u32 {s(sE0)}, {s(sE0)}, 1024
            v_add3_u32 {v(AD+3)}, {v(AD+3)}, {v(AD+4)}, {s(sE0)}"""))
        for i in range(1, 16):
            for k in range(4):
                q.append(Ins(f"v_add_f32 {v(dst[0]+k)}, {v(dst[0]+k)}, {v(dst[i]+k)}"))
        for i in range(1, 8):
            q.append(Ins(f"v_add_f32 {v(Z)}, {v(Z)}, {v(Z+i)}"))
        q.extend(L(f"""v_cvt_pk_bf16_f32 {v(dst[0])}, {v(dst[0])}, {v(dst[0]+1)}
            v_cvt_pk_bf16_f32 {v(dst[0]+1)}, {v(dst[0]+2)}, {v(dst[0]+3)}
            v_mov_b32 {v(Z+1)}, {v(Z)}
            ds_write_b64 {v(AD)}, {v(dst[0],2)}
            v_permlane32_swap_b32 {v(Z)}, {v(Z+1)}
            v_add_f32 {v(Z)}, {v(Z)}, {v(Z+1)}
            ds_write_b32 {v(AD+2)}, {v(Z)}"""))
        self.mark(q, "kvsum")

    def q_epilogue(self, q):
        acc = ACC[0]
        AD = vT + 44
        KV, Z0, Z1, A0, A1, T = vT, vT + 4, vT + 12, vT + 20, vT + 24, vT + 56
        D3 = (acc + 32, acc + 48)
        q.extend(L(f"""ds_read_b128 {v(KV,4)}, {v(AD+1)}
            ds_read_b128 {v(Z0,4)}, {v(AD+3)}
            ds_read_b128 {v(Z0+4,4)}, {v(AD+3)} offset:32
            ds_read_b128 {v(Z1,4)}, {v(AD+3)} offset:256
            ds_read_b128 {v(Z1+4,4)}, {v(AD+3)} offset:288"""))
        q.extend(self.phi_block(acc, T))
        for i in range(8):
            q.append(Ins(f"v_add_f32 {v(Z0+i)}, {v(Z0+i)}, {v(Z1+i)}"))
        for k in range(4):
            q.append(Ins(f"v_cvt_pk_bf16_f32 {v(Z0+k)}, {v(Z0+2*k)}, {v(Z0+2*k+1)}"))
        for k in range(4):
            q.append(Ins(f"v_cndmask_b32 {v(A0+k)}, {v(Z0+k)}, {v(KV+k)}, {s(sMask,2)}"))
            q.append(Ins(f"v_cndmask_b32 {v(A1+k)}, {v(KV+k)}, {v(Z0+k)}, {s(sMask,2)}"))
        q.append(Group(L(f"""s_lshl_b32 {s(sE1)}, {s(sColA)}, 6
            s_add_u32 {s(sE1)}, {s(sE1)}, {1792*128}
            s_add_u32 {s(sE0)}, {s(sE1)}, {s(sSt0)}
            s_add_u32 {s(sE1)}, {s(sE1)}, {s(sSt1)}""")))

        def mf(j):
            Q = acc + 16 * j
            return [Ins(f"{MF} {v(D3[0],16)}, {v(A0,4)}, {v(Q,4)}, 0", cost=32),
                    Ins(f"{MF} {v(D3[1],16)}, {v(A1,4)}, {v(Q+4,4)}, 0", cost=32)]

        def fin(j):
            Q = acc + 16 * j
            r = []
            for hh in range(2):
                den = D3[hh] + (8 if hh == 0 else 0)
                r.append(Ins(f"v_add_f32 {v(T+hh)}, {f2u(EPS):#x}, {v(den)}"))
            for hh in range(2):
                r.append(Ins(f"v_rcp_f32 {v(T+hh)}, {v(T+hh)}"))
            for hh in range(2):
                num = D3[hh] + (0 if hh == 0 else 8)
                r += [Ins(f"v_mul_f32 {v(num+i)}, {v(num+i)}, {v(T+hh)}") for i in range(8)]
                r += [Ins(f"v_cvt_pk_bf16_f32 {v(Q+8+4*hh+k)}, {v(num+2*k)}, {v(num+2*k+1)}") for k in range(4)]
                off = " offset:2048" if hh else ""
                r.append(Ins(f"buffer_store_dwordx4 {v(Q+8+4*hh,4)}, {v(vL16)}, {s(SWS,4)}, {s((sE0, sE1)[j])} offen{off} sc1", tag="st3"))
            return r

        q.extend(mf(0))
        q.extend(self.phi_block(acc + 16, T))
        q.extend(fin(0))
        q.extend(mf(1))
        self.hold_steps(q, 1)
        q.extend(fin(1))

    def build_steps(self):
        steps = []

        def trw(base, fill, sub, fr):
            addr = (fill % NSLOT) * SLOT + sub
            w, imm = addr >> 16, addr & 0xFFFF
            return [Ins(f"ds_read_b64_tr_b16 {v(fr,2)}, {v(base+w)} offset:{imm}"),
                    Ins(f"ds_read_b64_tr_b16 {v(fr+2,2)}, {v(base+w)} offset:{imm+512}")]

        def xreads(fill, sidx, ks):
            addr = (fill % NSLOT) * SLOT
            w, imm = addr >> 16, addr & 0xFFFF
            r = []
            if w != self.xwin:
                d = (w - self.xwin) * 65536
                for i in range(8):
                    if d > 0:
                        r.append(Ins(f"v_add_u32 {v(vT+2+i)}, {d:#x}, {v(vT+2+i)}"))
                    else:
                        r.append(Ins(f"v_subrev_u32 {v(vT+2+i)}, {-d:#x}, {v(vT+2+i)}"))
                self.xwin = w
            for j in range(2):
                r.append(Ins(f"ds_read_b128 {a_(128*j+4*ks,4)}, {v(vT+2+2*sidx+j)} offset:{imm}"))
            return r

        def mfma(d, wf, xf, first, trans=True):
            c = "0" if first else v(d, 16)
            A, B = (v(wf, 4), a_(xf, 4)) if trans else (a_(xf, 4), v(wf, 4))
            return Ins(f"{MF} {v(d,16)}, {A}, {B}, {c}")

        for p in range(2):
            acc = ACC[p]
            trans = not (self.typ == "A" and p == 0)
            for j in range(8):
                fill = 2 * j + 1 if p == 0 else 16 + j
                for sidx in range(4):
                    ks = 4 * j + sidx

                    def reads(fr, p=p, fill=fill, sidx=sidx, ks=ks):
                        r = []
                        if p == 0:
                            r += xreads(fill - 1, sidx, ks)
                        r += trw(vW, fill, sidx * 4096, fr) + trw(vW, fill, sidx * 4096 + 2048, fr + 4)
                        return r

                    def mfs(fr, acc=acc, ks=ks, trans=trans):
                        return [mfma(acc + 32 * t + 16 * jj, fr + 4 * t, 128 * jj + 4 * ks, ks == 0, trans)
                                for t in range(2) for jj in range(2)]

                    steps.append(dict(reads=reads, mf=mfs, bar=fill if sidx == 0 else None, first=(fill - 1 if p == 0 else fill), ph=p))
        acc = ACC[0]
        if self.typ == "A":
            for j in range(4):
                fill = 24 + j
                for sidx in range(4):
                    def reads(fr, fill=fill, sidx=sidx):
                        return trw(vW, fill, sidx * 4096, fr) + trw(vW, fill, sidx * 4096 + 2048, fr + 4)

                    def mfs(fr, j=j, sidx=sidx):
                        return [mfma(acc + 16 * jj, fr + 4 * m, 128 * jj + 4 * (8 * j + 4 * m + sidx), j == 0 and sidx == 0 and m == 0)
                                for m in range(2) for jj in range(2)]

                    steps.append(dict(reads=reads, mf=mfs, bar=fill if sidx == 0 else None, first=fill, ph=2))
        else:
            for j in range(8):
                fill = 24 + j
                for sidx in range(4):
                    ks = 4 * j + sidx

                    def reads(fr, fill=fill, sidx=sidx):
                        return trw(vWh, fill, sidx * 4096, fr) + trw(vWh, fill, sidx * 4096 + 2048, fr + 4)

                    def mfs(fr, ks=ks):
                        return [mfma(acc + 32 * t, fr + 4 * t, 4 * ks, ks == 0) for t in range(2)]

                    steps.append(dict(reads=reads, mf=mfs, bar=fill if sidx == 0 else None, first=fill, ph=2))
        self.n1 = len(steps)
        for u in range(18):
            fill = self.nfill1 + u
            addr = (fill % NSLOT) * SLOT
            w, imm = addr >> 16, addr & 0xFFFF
            acc = ACC[1] if u < 14 else ACC[0]
            for k in range(2):
                def reads(fr, w=w, imm=imm, k=k):
                    r = []
                    for t in range(2):
                        r.append(Ins(f"ds_read_b64_tr_b16 {v(fr+4*t,2)}, {v(vQ+3*t+w)} offset:{imm+2048*k}"))
                        r.append(Ins(f"ds_read_b64_tr_b16 {v(fr+4*t+2,2)}, {v(vQ+3*t+w)} offset:{imm+2048*k+1024}"))
                    return r

                def mfs(fr, u=u, k=k, acc=acc):
                    first = k == 0 and u in (0, 14)
                    return [mfma(acc + 32 * t + 16 * rb, fr + 4 * t, self.areg(u) + 8 * k + 4 * rb, first)
                            for t in range(2) for rb in range(2)]

                steps.append(dict(reads=reads, mf=mfs, bar=None, own=fill if k == 0 else None, frees=fill if k == 1 else None, ph=3, u=u, k=k))
        self.steps = steps

    def barrier(self, fill=None, first=None):
        if fill is not None:
            self.e(f"@waitvm F{fill}")
        self.e("@waitlgkm\ns_barrier")
        self.nbar += 1
        if first is not None:
            self.free_upto = max(self.free_upto, first + NSLOT)

    def issue_reads(self, t):
        st = self.steps[t]
        if st.get("bar") is not None:
            self.flush_mem_upto(st["bar"])
            self.barrier(st["bar"], st["first"])
        if t == self.n1:
            if self.typ == "A":
                self.need("kvsum")
            self.barrier(None, self.nfill1)
            self.marks.add("endbar")
            self.stamp("endbar")
        if st.get("own") is not None:
            self.flush_mem_upto(st["own"])
            self.e(f"@waitvm F{st['own']}")
        return st["reads"](vFR + 8 * (t % 4))

    def flush_mem_upto(self, fill):
        self.queue_fills()
        tag = f"F{fill}"
        assert self.next_fill > fill, (fill, self.next_fill)

        def pending():
            for it in self.mem:
                if isinstance(it, Group) and any(x.tag == tag for x in it.items):
                    return True
            return False
        while pending():
            it = self.mem.popleft()
            if isinstance(it, Hold):
                assert it.name == "time" or it.cond(), ("mem flush across hold", it.name, fill)
                continue
            if isinstance(it, Call):
                it.fn()
                continue
            self.e(it)

    def plan_side_streams(self):
        cfg, epi, ctl, typ = self.cfg, self.epi, self.ctl, self.typ
        n1 = self.n1

        def aloads(us):
            for u in us:
                ctl.extend(self.aload_ins(u))

        def gloads():
            ctl.extend(L(f"""s_add_u32 {s(sT3)}, {s(sPoll)}, {G_OFF - FLAG_OFF}
                buffer_load_dword {v(vg)}, {v(vGld)}, {s(SWS,4)}, {s(sT3)} offen sc1
                buffer_load_dword {v(vg+1)}, {v(vGld)}, {s(SWS,4)}, {s(sT3)} offen offset:2048 sc1"""))

        def poll(voff, soff, want, name, d0, d1, srd=SWS):
            self.hold_steps(ctl, d0)
            ctl.append(self.poll_load(voff, soff, srd))
            self.hold_steps(ctl, d1)
            ctl.append(self.poll_check(voff, soff, want, srd))
            ctl.extend(self.stamp_ins(name))

        self.hold_mark(epi, "gld")
        self.hold_steps(epi, 8)
        self.g_compute(epi)
        self.mark(epi, "g")
        self.hold_after_step(epi, 31)
        epi.extend(self.stamp_ins("pass1"))
        if typ == "A":
            self.kv_epilogue(epi)
        else:
            self.gu_epilogue(epi, ACC[0], sCol1, "st1")
        epi.extend(self.stamp_ins("e1"))
        self.mark(epi, "e1")
        self.hold_after_step(epi, 63)
        epi.extend(self.stamp_ins("pass2"))
        self.gu_epilogue(epi, ACC[1], sCol2, "st2")
        epi.extend(self.stamp_ins("e2"))
        self.mark(epi, "e2")
        if typ == "A":
            self.kv_gather_plan()
            self.hold_mark(epi, "kvld")
            self.kv_gather_sum(epi)
            self.hold_mark(epi, "endbar")
        self.hold_after_step(epi, n1 - 1)
        if typ == "A":
            self.q_epilogue(epi)
        else:
            self.gu_epilogue(epi, ACC[0], sCol3, "st3", half=True)
        epi.extend(self.stamp_ins("e3"))
        self.mark(epi, "e3")
        self.hold_after_step(ctl, cfg.gld)
        ctl.extend(L(f"""buffer_load_dwordx4 {v(vT+12,4)}, {v(vL16)}, {s(SX,4)}, {s(sE1)} offen
            buffer_load_dwordx4 {v(vT+16,4)}, {v(vL16)}, {s(SX,4)}, {s(sE1)} offen offset:1024
            global_load_dwordx4 {v(vT+20,4)}, {v(vL16)}, {s(pGW,2)}"""))
        self.mark(ctl, "gld")
        self.hold_after_step(ctl, cfg.init0)
        poll(vg, "0", 1, "init", 0, cfg.init1, SDBG)
        self.mark(ctl, "init")
        self.signal(ctl, 1, "st1", cfg.sig1)
        if typ == "A":
            poll(vKvp, "0", 1, "kvpoll", cfg.kvp0, cfg.kvp1)
            self.hold_after_step(ctl, 63)
            self.kv_gather_loads(ctl)
            self.mark(ctl, "kvld")
        poll(vPollF, s(sPoll), 1, "poll1", cfg.p10 if typ == "B" else 0, cfg.p11)
        self.hold_after_step(ctl, 64 + 3 if typ == "A" else 63)
        aloads(range(0, 4))
        gloads()
        self.mark(ctl, "a0")
        self.signal(ctl, 2, "st2", cfg.sig2)
        poll(vPollF, s(sPoll), 2, "poll2", cfg.p20, cfg.p21)
        self.hold_after_step(ctl, n1 - 1)
        aloads(range(4, 12))
        self.mark(ctl, "a4")
        self.signal(ctl, 3, "st3", cfg.sig3)
        poll(vPollF, s(sPoll), 3, "poll3", cfg.p30, cfg.p31)
        aloads(range(12, 16))
        self.hold_after_step(ctl, n1 + 3)
        aloads(range(16, 18))
        self.mark(ctl, "a12")
        self.hold_mark(epi, "a0")
        epi.extend(L(f"v_sub_f32 {v(vom)}, 1.0, {v(vg)}\nv_sub_f32 {v(vom+1)}, 1.0, {v(vg+1)}"))
        AD = vT
        epi.extend(L(f"""v_lshrrev_b32 {v(AD+8)}, 4, {v(vL16)}
            v_and_b32 {v(AD+9)}, 15, {v(AD+8)}
            v_lshlrev_b32 {v(AD+9)}, 8, {v(AD+9)}
            v_bfe_u32 {v(AD+10)}, {v(AD+8)}, 4, 1
            v_lshl_add_u32 {v(AD+9)}, {v(AD+10)}, 14, {v(AD+9)}
            v_lshrrev_b32 {v(AD+10)}, 5, {v(AD+8)}
            v_and_b32 {v(AD+11)}, 7, {v(AD+8)}
            v_xor_b32 {v(AD+10)}, {v(AD+10)}, {v(AD+11)}
            v_lshl_add_u32 {v(AD+9)}, {v(AD+10)}, 4, {v(AD+9)}
            v_add_u32 {v(AD)}, {s(sM0)}, {v(AD+9)}
            v_xor_b32 {v(AD+1)}, 32, {v(AD)}
            v_xor_b32 {v(AD+2)}, 64, {v(AD)}
            v_xor_b32 {v(AD+3)}, 0x60, {v(AD)}
            v_lshrrev_b32 {v(AD+9)}, 3, {v(AD+8)}
            v_lshlrev_b32 {v(AD+10)}, 1, {v(AD+11)}
            v_xor_b32 {v(AD+10)}, {v(AD+10)}, {v(AD+9)}
            v_lshlrev_b32 {v(AD+10)}, 4, {v(AD+10)}
            v_lshl_add_u32 {v(AD+10)}, {v(AD+9)}, 8, {v(AD+10)}
            s_lshl_b32 {s(sE0)}, {s(sM0)}, 2
            v_add_u32 {v(AD+4)}, {s(sE0)}, {v(AD+10)}
            v_xor_b32 {v(AD+5)}, 16, {v(AD+4)}
            v_lshlrev_b32 {v(AD+10)}, 4, {v(AD+11)}
            v_lshl_add_u32 {v(AD+6)}, {v(AD+9)}, 10, {v(AD+10)}
            v_add_u32 {v(AD+7)}, 0x2000, {v(AD+6)}"""))
        self.hold_after_step(epi, n1 + 27)
        for t in range(2):
            for rb in range(2):
                for i in range(16):
                    r = ACC[1] + 32 * t + 16 * rb + i
                    epi.append(Ins(f"v_mul_f32 {v(r)}, {v(r)}, {v(vom+rb)}"))
        self.mark(epi, "bscaled")

    def gen(self):
        cfg = self.cfg
        self.build_steps()
        self.plan_side_streams()
        steps, LA, n1 = self.steps, cfg.LA, self.n1
        if self.typ == "A":
            self.e(srd(SA0, pQKV, 0, 512 * 3072) + srd(SA1, pQKV, -2048, 512 * 3072))
        else:
            self.e(srd(SG, pWG, 0, 512 * 3584) + srd(SU, pWU, -2048, 512 * 3584))
        self.queue_fills()
        k = 0
        while k < 8:
            self.e(self.mem.popleft())
            k += 1
            if k == 4:
                self.e(f"buffer_store_dwordx4 {v(vT+28,4)}, {v(vT+26)}, {s(SWS,4)}, 0 offen sc1")
        self.e(late_setup(self.typ, cfg))
        while k < 4 * cfg.init_fills:
            self.e(self.mem.popleft())
            k += 1
        self.stamp("issued")
        for t in range(LA):
            self.e(self.issue_reads(t))
            if t == 0:
                self.stamp("firstbar")
                self.e(f"v_mov_b32 {v(vPoll)}, 1")
                self.e(f"buffer_store_dword {v(vPoll)}, {v(vT+27)}, {s(SDBG,4)}, 0 offen sc1")
        for t, st in enumerate(steps):
            self.t = t
            if t == 32:
                self.need("g")
            if t == 64:
                self.need("e1")
            if t == n1:
                self.need("e2")
                self.need("a0")
            if st["ph"] == 3 and st["k"] == 0:
                if st["u"] == 4:
                    self.need("a4")
                if st["u"] == 12:
                    self.need("a12")
            mfs = st["mf"](vFR + 8 * (t % 4))
            budget = cfg.budget if st["ph"] in (1, 2) else cfg.budget + 16
            pend = None
            self.vm_gap = cfg.vmgap[st["ph"]]
            for i, m in enumerate(mfs):
                self.e(m)
                self.nmf += 1
                used = 0
                if i == 0 and t + LA < len(steps):
                    pend = self.issue_reads(t + LA)
                if pend:
                    n = -(-len(pend) // (len(mfs) - i)) if len(mfs) - i > 1 and len(pend) > 2 else len(pend)
                    n = max(n, 2)
                    for x in pend[:n]:
                        self.e(x)
                        used += x.cost
                    pend = pend[n:]
                if st.get("frees") is not None and i == 2:
                    self.free_upto = max(self.free_upto, st["frees"] + 1 + NSLOT)
                self.gap(used, budget)
            assert not pend
        self.t = len(steps)
        self.stamp("mainend")
        self.need("bscaled")
        assert not self.mem and not self.epi and not self.ctl, (len(self.mem), len(self.epi), len(self.ctl))
        AD = vT
        for t in range(2):
            for rb in range(2):
                A, B = ACC[0] + 32 * t + 16 * rb, ACC[1] + 32 * t + 16 * rb
                for j in range(4):
                    for i in range(4 * j, 4 * j + 4):
                        self.e(f"v_fmac_f32 {v(B+i)}, {v(A+i)}, {v(vg+rb)}")
                    self.e(f"ds_write_b128 {v(AD+j)}, {v(B+4*j,4)} offset:{t*128+rb*32768}")
        self.barrier()
        R = ACC[0]
        for jj in range(2):
            for w in range(4):
                for e in range(2):
                    self.e(f"ds_read_b128 {v(R+32*jj+8*w+4*e,4)}, {v(AD+4+e)} offset:{jj*2048+w*4096}")
        fl = " sc1" if cfg.out_sc1 else ""
        for jj in range(2):
            b = R + 32 * jj
            for w in range(1, 4):
                for i in range(8):
                    self.e(f"v_add_f32 {v(b+i)}, {v(b+i)}, {v(b+8*w+i)}")
            for k in range(4):
                self.e(f"v_cvt_pk_bf16_f32 {v(b+k)}, {v(b+2*k)}, {v(b+2*k+1)}")
            self.e(f"buffer_store_dwordx4 {v(b,4)}, {v(AD+6+jj)}, {s(SOUT,4)}, {s(sOut)} offen{fl}")
        if cfg.stamps:
            self.stamp("stored")
            self.e("@waitvm all")
            self.stamp("end")
            self.e(f"""s_memrealtime {s(sSt,2)}
                v_writelane_b32 {v(vStamp)}, {s(sSt)}, 31
                s_lshl_b32 {s(sE0)}, s2, 2
                s_add_u32 {s(sE0)}, {s(sE0)}, {s(sW)}
                s_lshl_b32 {s(sE0)}, {s(sE0)}, 7
                s_add_u32 {s(sE0)}, {s(sE0)}, {STAMP_OFF}
                buffer_store_dword {v(vStamp)}, {v(vZst)}, {s(SWS,4)}, {s(sE0)} offen""")
            if cfg.dbgwg is not None:
                self.e(f"""v_readlane_b32 {s(sE1)}, {v(vStamp)}, 30
                    s_lshl_b32 {s(sE0)}, s2, 2
                    s_add_u32 {s(sE0)}, {s(sE0)}, {s(sW)}
                    s_cmp_eq_u32 {s(sE0)}, {cfg.dbgwg*4}
                    s_cselect_b32 {s(sE0)}, 0, {OOB:#x}
                    v_subrev_u32 {v(vStamp)}, {s(sE1)}, {v(vStamp)}
                    v_subrev_u32 {v(vPoll)}, {4*cfg.dbgskip}, {v(vZst)}
                    v_cmp_gt_u32 vcc, 64, {v(vPoll)}
                    v_mov_b32 {v(vKvp)}, {OOB:#x}
                    v_cndmask_b32 {v(vPoll)}, {v(vKvp)}, {v(vPoll)}, vcc
                    buffer_store_dword {v(vStamp)}, {v(vPoll)}, {s(SDBG,4)}, {s(sE0)} offen""")
        self.e("s_endpgm")
        return self.out


def decode(dst):
    i, c, rg, idx, ty, rh, ch, prt, rt, ct, fd = [s(dst + k) for k in range(11)]
    return L(f"""s_bfe_u32 {i}, s2, 0x30003
        s_lshr_b32 {c}, s2, 6
        s_and_b32 {rg}, s2, 1
        s_lshl_b32 {rg}, {rg}, 3
        s_add_u32 {rg}, {rg}, {i}
        s_bfe_u32 {idx}, s2, 0x20001
        s_lshl_b32 {idx}, {idx}, 1
        s_and_b32 {ty}, {c}, 1
        s_add_u32 {idx}, {idx}, {ty}
        s_lshr_b32 {ty}, {c}, 1
        s_lshr_b32 {rh}, {s(sW)}, 1
        s_and_b32 {ch}, {s(sW)}, 1
        s_lshl_b32 {prt}, {rg}, 1
        s_add_u32 {prt}, {prt}, {rh}
        s_and_b32 {rt}, s2, 7
        s_lshl_b32 {rt}, {rt}, 2
        s_bfe_u32 {ct}, s2, 0x20003
        s_add_u32 {rt}, {rt}, {ct}
        s_lshr_b32 {ct}, s2, 5
        s_lshl_b32 {fd}, {ty}, 3
        s_add_u32 {fd}, {fd}, {idx}
        s_lshl_b32 {fd}, {fd}, 1
        s_add_u32 {fd}, {fd}, {ch}""")


DEC = 56


def prologue(cfg, code_lines):
    T = vT
    i, c, rg, idx, ty, rh, ch, prt, rt, ct, fd = [s(DEC + k) for k in range(11)]
    p = []
    p += L(f"""s_cmp_ge_u32 s2, 256
        s_cbranch_scc1 L_exit
        s_load_dwordx16 {s(pX,16)}, s[0:1], 0
        s_load_dwordx4 {s(pOUT,4)}, s[0:1], 64
        s_load_dwordx2 {s(pWS,2)}, s[0:1], 80""")
    if cfg.stamps:
        p += L("s_memrealtime s[72:73]\ns_memtime s[74:75]")
    p += L(f"""v_lshrrev_b32 {v(T+30)}, 6, v0
        v_lshlrev_b32 {v(T+26)}, 4, v0
        v_readfirstlane_b32 {s(sW)}, {v(T+30)}
        v_cmp_eq_u32 vcc, 0, v0
        v_and_b32 v0, 63, v0
        v_lshlrev_b32 {v(vL16)}, 4, v0""")
    if cfg.code_pf:
        per = -(-code_lines // 32)
        p += L(f"""s_getpc_b64 s[32:33]
            s_and_b32 s32, s32, 0xffffff00
            s_lshr_b32 {s(sT0)}, s2, 3
            s_mul_i32 {s(sT0)}, {s(sT0)}, {per}
            v_min_u32 {v(T+40)}, {per-1}, v0
            v_add_u32 {v(T+40)}, {s(sT0)}, {v(T+40)}
            v_min_u32 {v(T+40)}, {code_lines-1}, {v(T+40)}
            v_lshlrev_b32 {v(T+40)}, 7, {v(T+40)}
            global_load_dword {v(T+41)}, {v(T+40)}, s[32:33]""")
    p += decode(DEC)
    p += L(f"""s_lshl_b32 {s(sM0)}, {s(sW)}, 12
        s_lshl_b32 {s(sXoff)}, {rg}, 17
        s_lshl_b32 {s(sColA)}, {idx}, 7""")
    if cfg.rot:
        p += L(f"s_lshl_b32 s45, {c}, 1\ns_add_u32 s45, s45, {i}")
    else:
        p += L("s_mov_b32 s45, 0")
    for j in range(8):
        p += L(f"s_add_u32 s46, s45, {j}\ns_and_b32 s46, s46, 7\ns_lshl_b32 {s(sK0+j)}, s46, 6")
    p += L(f"""s_lshr_b32 s46, {idx}, 1
        s_mul_i32 s46, s46, 640
        s_add_u32 {s(sCol3)}, s46, 256
        s_and_b32 s47, {idx}, 1
        s_mul_i32 s48, s47, 384
        s_add_u32 {s(sCol1)}, s46, s48
        s_add_u32 {s(sCol2)}, {s(sCol1)}, 128
        s_add_u32 s46, {s(sColA)}, 2560
        s_cmp_eq_u32 {ty}, 0
        s_cselect_b32 {s(sCol2)}, s46, {s(sCol2)}
        s_lshl_b32 s46, s2, 12
        s_add_u32 s46, s46, {FLAG_OFF}
        s_lshl_b32 s47, s2, 2
        s_add_u32 s47, s47, 128
        s_cmp_lt_u32 s2, 32
        s_cselect_b32 s46, s46, {OOB:#x}
        s_cselect_b32 s47, s47, {OOB:#x}""")
    A, B, C, D, E = T + 32, T + 33, T + 34, T + 35, T + 36
    p += L(f"""v_add_u32 {v(T+26)}, s46, {v(T+26)}
        v_mov_b32 {v(T+27)}, {OOB:#x}
        v_mov_b32 {v(A)}, s47
        v_cndmask_b32 {v(T+27)}, {v(T+27)}, {v(A)}, vcc
        v_mov_b32 {v(T+28)}, 0
        v_mov_b32 {v(T+29)}, 0
        v_mov_b32 {v(T+30)}, 0
        v_mov_b32 {v(T+31)}, 0
        v_lshrrev_b32 {v(A)}, 3, v0
        v_lshrrev_b32 {v(B)}, 2, v0
        v_and_b32 {v(B)}, 4, {v(B)}
        v_and_b32 {v(C)}, 7, v0
        v_xor_b32 {v(B)}, {v(B)}, {v(C)}
        v_lshlrev_b32 {v(B)}, 4, {v(B)}
        v_lshl_add_u32 {v(vP0)}, {v(A)}, 10, {v(B)}
        v_add_u32 {v(vP1)}, {8*1024-1024}, {v(vP0)}
        s_lshl_b32 s46, {s(sW)}, 4
        v_add_u32 {v(D)}, s46, {v(A)}
        v_mul_u32_u24 {v(E)}, 3072, {v(D)}
        v_add_u32 {v(vD0)}, {v(E)}, {v(B)}
        v_add_u32 {v(vD1)}, {8*3072-1024}, {v(vD0)}
        v_mul_u32_u24 {v(E)}, 3584, {v(D)}
        v_add_u32 {v(vG0)}, {v(E)}, {v(B)}
        v_add_u32 {v(vG1)}, {8*3584-1024}, {v(vG0)}
        v_lshrrev_b32 {v(B)}, 4, v0
        v_xor_b32 {v(B)}, {v(B)}, {v(C)}
        v_lshlrev_b32 {v(B)}, 4, {v(B)}
        s_lshl_b32 s46, {s(sW)}, 5
        v_add_u32 {v(D)}, s46, {v(A)}
        v_lshl_add_u32 {v(T)}, {v(D)}, 10, {v(B)}
        v_xor_b32 {v(T+1)}, 64, {v(T)}
        v_add_u32 {v(T+1)}, {8*1024-1024}, {v(T+1)}""")
    p += L("@waitlgkm")
    p += srd(SX, pX, 0, 2048 * 1024) + srd(SX2, pX, 16 * 1024 - 2048, 2048 * 1024) + srd(SWS, pWS, 0, WS_BYTES)
    if cfg.stamps:
        p += L(f"""v_mov_b32 {v(vStamp)}, 0
            v_writelane_b32 {v(vStamp)}, s72, 0
            v_writelane_b32 {v(vStamp)}, s74, 30""")
    p += L(f"s_cmp_lg_u32 {ty}, 0\ns_cbranch_scc1 L_typeB")
    return p


def late_setup(typ, cfg):
    T = vT
    i, c, rg, idx, ty, rh, ch, prt, rt, ct, fd = [s(DEC + k) for k in range(11)]
    p = []
    t0, t1, t2 = s(sT0), s(sT1), s(sT2)
    p += L(f"""s_mul_i32 {t0}, {prt}, {144*2048}
        s_add_u32 {t0}, {t0}, {A_OFF}
        s_lshl_b32 {t1}, {ch}, 12
        s_add_u32 {t0}, {t0}, {t1}
        s_lshl_b32 {t1}, {ch}, 10
        s_add_u32 {s(sSt0)}, {t0}, {t1}
        s_xor_b32 {t1}, {t1}, 1024
        s_add_u32 {s(sSt1)}, {t0}, {t1}
        s_lshl_b32 {s(sFlag)}, {prt}, 5
        s_add_u32 {s(sFlag)}, {s(sFlag)}, {fd}
        s_lshl_b32 {s(sFlag)}, {s(sFlag)}, 7
        s_add_u32 {s(sFlag)}, {s(sFlag)}, {FLAG_OFF}
        s_lshl_b32 {s(sPoll)}, {rt}, 12
        s_add_u32 {s(sPoll)}, {s(sPoll)}, {FLAG_OFF}
        s_mul_i32 {s(sA2)}, {rt}, {144*2048}
        s_add_u32 {s(sA2)}, {s(sA2)}, {A_OFF}
        s_mov_b32 {s(sMask)}, 0xffff
        s_mov_b32 {s(sMask+1)}, 0xffff""")
    A, B, C, D, E = T + 32, T + 33, T + 34, T + 35, T + 36
    p += L(f"""v_bfe_u32 {v(B)}, v0, 2, 2
        v_lshlrev_b32 {v(A)}, 7, {v(B)}
        v_and_b32 {v(B)}, 2, {v(B)}
        v_bfe_u32 {v(C)}, v0, 4, 1
        v_lshl_add_u32 {v(A)}, {v(C)}, 5, {v(A)}
        v_and_b32 {v(C)}, 3, v0
        v_lshl_add_u32 {v(A)}, {v(C)}, 3, {v(A)}
        v_lshrrev_b32 {v(D)}, 5, v0
        v_lshl_add_u32 {v(A)}, {v(B)}, 5, {v(A)}
        v_lshl_add_u32 {v(E)}, {v(D)}, 10, {v(A)}
        s_lshl_b32 {t0}, {ch}, 6
        v_xor_b32 {v(vW)}, {t0}, {v(E)}
        v_add_u32 {v(vW+1)}, 0x10000, {v(vW)}
        v_add_u32 {v(vW+2)}, 0x20000, {v(vW)}""")
    if typ == "B":
        p += L(f"""s_and_b32 {t0}, {idx}, 1
            s_lshl_b32 {t0}, {t0}, 6
            v_xor_b32 {v(vWh)}, {t0}, {v(E)}
            v_add_u32 {v(vWh+1)}, 0x10000, {v(vWh)}
            v_add_u32 {v(vWh+2)}, 0x20000, {v(vWh)}""")
    p += L(f"""v_lshl_add_u32 {v(E)}, {v(D)}, 9, {v(A)}
        v_add_u32 {v(vQ)}, {s(sM0)}, {v(E)}
        v_add_u32 {v(vQ+1)}, 0x10000, {v(vQ)}
        v_add_u32 {v(vQ+2)}, 0x20000, {v(vQ)}
        v_xor_b32 {v(vQ+3)}, 64, {v(vQ)}
        v_xor_b32 {v(vQ+4)}, 64, {v(vQ+1)}
        v_xor_b32 {v(vQ+5)}, 64, {v(vQ+2)}""")
    p += L(f"""v_and_b32 {v(A)}, 31, v0
        v_lshlrev_b32 {v(vPollF)}, 7, {v(A)}
        v_lshlrev_b32 {v(vg)}, 2, {v(A)}
        v_add_u32 {v(vg)}, 128, {v(vg)}
        s_lshl_b32 {t0}, {s(sW)}, 5
        v_add_u32 {v(B)}, {t0}, {v(A)}
        v_bfe_u32 {v(C)}, v0, 1, 3
        v_xor_b32 {v(C)}, {v(C)}, {v(D)}
        v_lshlrev_b32 {v(C)}, 4, {v(C)}
        v_lshl_add_u32 {v(T+2)}, {v(B)}, 7, {v(C)}""")
    for k in range(1, 8):
        p += L(f"v_xor_b32 {v(T+2+k)}, {(k>>1)*32 + (k&1)*4096}, {v(T+2)}")
    p += L(f"""v_mov_b32 {v(vK1)}, {f2u(K1):#x}
        v_mov_b32 {v(E)}, {OOB:#x}
        v_lshrrev_b32 {v(B)}, 1, {v(A)}
        v_and_b32 {v(C)}, 1, v0
        v_lshlrev_b32 {v(C)}, 2, {v(C)}
        v_lshl_add_u32 {v(vGld)}, {v(B)}, 7, {v(C)}
        v_cmp_gt_u32 vcc, 16, {v(A)}
        v_lshlrev_b32 {v(C)}, 2, {v(D)}
        v_lshl_add_u32 {v(C)}, {v(A)}, 3, {v(C)}
        v_and_b32 {v(B)}, 15, v0
        v_lshlrev_b32 {v(B)}, 13, {v(B)}
        v_cndmask_b32 {v(vGst)}, {v(E)}, {v(C)}, vcc
        v_cmp_eq_u32 vcc, 0, {v(D)}
        v_lshlrev_b32 {v(C)}, 2, {v(A)}
        s_lshl_b32 {t0}, {rh}, 12
        s_lshl_b32 {t1}, {fd}, 7
        s_add_u32 {t0}, {t0}, {t1}
        s_add_u32 {t0}, {t0}, {FLAG_OFF}
        v_cndmask_b32 {v(vZst)}, {v(E)}, {v(C)}, vcc
        v_add_u32 {v(vKvp)}, {t0}, {v(B)}""")
    if typ == "A":
        p += srd(SG, pWG, 0, 512 * 3584) + srd(SU, pWU, -2048, 512 * 3584)
    p += srd(SOUT, pOUT, 0, 2048 * 1024) + srd(SDBG, pDBG, 0, 256)
    p += srd(SO2, pWO, 16 * 1024 - 2048, 512 * 1024)
    p += L(f"""s_lshl_b32 {t0}, {idx}, 2
        s_lshl_b32 {t1}, {ch}, 1
        s_add_u32 {t0}, {t0}, {t1}
        s_add_u32 {t0}, {t0}, {rh}
        s_lshl_b32 {t0}, {t0}, 4
        s_add_u32 {t0}, {t0}, {rg}
        s_lshl_b32 {s(sZ)}, {t0}, 7
        s_add_u32 {s(sZ)}, {s(sZ)}, {Z_OFF}
        s_lshl_b32 {s(sSpin)}, {t0}, 10
        s_add_u32 {s(sGst)}, {s(sFlag)}, {G_OFF - FLAG_OFF}
        s_lshl_b32 {t0}, {rt}, 2
        s_add_u32 {t0}, {t0}, {s(sW)}
        s_lshl_b32 {t0}, {t0}, 14
        s_lshl_b32 {s(sT3)}, {ct}, 7
        s_add_u32 {s(sOut)}, {t0}, {s(sT3)}
        s_and_b32 {t0}, {idx}, 1
        s_sub_u32 {t0}, {t0}, {ch}
        s_lshl_b32 {s(sT4)}, {t0}, 12""")
    if cfg.rot:
        p += L(f"s_add_u32 {t0}, {rt}, {ct}")
    else:
        p += L(f"s_mov_b32 {t0}, 0")
    for k in range(4):
        p += L(f"""s_add_u32 {t1}, {t0}, {k}
            s_and_b32 {t1}, {t1}, 3
            s_lshl_b32 {t2}, {s(sW)}, 2
            s_add_u32 {t2}, {t2}, {t1}
            s_lshl_b32 {s(sRotB+k)}, {t2}, 5
            s_lshr_b32 {t2}, {t1}, 1
            s_add_u32 {t2}, {t2}, {t2}
            s_add_u32 {t2}, {t2}, {t2}
            s_add_u32 {t1}, {t1}, {t2}
            s_mul_i32 {t2}, {s(sW)}, 10
            s_add_u32 {t1}, {t1}, {t2}
            s_lshl_b32 {s(sRotA+k)}, {t1}, 5""")
    p += srd(SD, pWD, 0, 1792 * 1024) + srd(SD2, pWD, 16 * 1024 - 2048, 1792 * 1024) + srd(SO, pWO, 0, 512 * 1024)
    p += L(f"""s_mov_b32 {s(sW2)}, {s(sT3)}
        s_add_u32 {s(sKV)}, {s(sSpin)}, {KV_OFF}
        s_sub_u32 {s(sE1)}, {s(sGst)}, {G_OFF}
        s_lshl_b32 {s(sE1)}, {s(sE1)}, 4""")
    return p


def srd(d, base, delta, nbytes):
    r = []
    if delta > 0:
        r += L(f"s_add_u32 {s(d)}, {s(base)}, {delta}\ns_addc_u32 {s(d+1)}, {s(base+1)}, 0")
    elif delta < 0:
        r += L(f"s_sub_u32 {s(d)}, {s(base)}, {-delta}\ns_subb_u32 {s(d+1)}, {s(base+1)}, 0")
    else:
        r += L(f"s_mov_b32 {s(d)}, {s(base)}\ns_mov_b32 {s(d+1)}, {s(base+1)}")
    r += L(f"s_mov_b32 {s(d+2)}, {nbytes - delta}\ns_mov_b32 {s(d+3)}, 0x20000")
    return r


HEADER = """; Fused gated mix of a linear-attention block and a GeGLU FFN, one persistent launch (generated by gen/kernel.py).
; Kernarg layout (88 bytes): A_x, A_wqkv, A_wo, B_x, B_w_gate, B_w_up, B_w_down, gate_w, d_out, d_debug, d_ws
; @launch grid=(256,1,1) block=(256,1,1) lds=%d
.amdgcn_target "amdgcn-amd-amdhsa--gfx950"
""" % LDS_BYTES


def build(cfg, code_lines=340, verbose=True):
    pro = prologue(cfg, code_lines)
    txt = []
    names = {}
    for typ in "AB":
        b = Body(typ, cfg)
        body = b.gen()
        if cfg.x_nodma:
            body = [x for x in body if x.kind != "dma"]
        if cfg.x_nobar:
            body = [x for x in body if x.kind != "barrier"]
        if cfg.x_noread:
            body = [x for x in body if x.kind != "ds_r"]
        if cfg.x_nomfma:
            body = [x for x in body if x.kind != "mfma"]
        if cfg.x_nopoll:
            body = [x for x in body if "_retry" not in x.text]
        lines = finalize(pro + body, verbose=verbose)
        if typ == "B":
            k = max(n for n, l in enumerate(lines) if "L_typeB" in l)
            lines = ["L_typeB:"] + lines[k + 1:]
        txt += lines + b.retry
        names[typ] = b.stamp_names
    txt.append("L_exit:\n    s_endpgm")
    lab = NAME + "_kernel"
    return ("; diagnostic build with stamps\n" if cfg.stamps else "") + HEADER + kernel_head(lab) + "\n".join(txt) + "\n" + kernel_desc(lab, 512, 256), names


if __name__ == "__main__":
    import json
    out = sys.argv[1]
    kw = {}
    for a in sys.argv[2:]:
        k, x = a.split("=")
        kw[k] = eval(x)
    import subprocess, re, os
    t, names = build(Cfg(**kw), 64, verbose=False)
    open(out, "w").write(t)
    subprocess.check_call(["clang", "-x", "assembler", "-target", "amdgcn-amd-amdhsa", "-mcpu=gfx950", "-c", out, "-o", "kk.o"])
    h = subprocess.check_output(["llvm-objdump", "-h", "kk.o"], text=True)
    size = int(re.search(r"\.text\s+([0-9a-f]+)", h).group(1), 16)
    print("code bytes", size)
    t, names = build(Cfg(**kw), (size - 64) // 128)
    open(out, "w").write(t)
    json.dump(names, open(out + ".names", "w"))
```
